```python
import torch

def _softmax(x, axis=-1):
    return torch.softmax(x, dim=axis)
def _gelu(x):
    return torch.nn.functional.gelu(x, approximate="tanh")
def _silu(x):
    return torch.nn.functional.silu(x)
def _sigmoid(x):
    return torch.sigmoid(x)
def _layernorm(x, axis=-1, eps=1e-5):
    m = x.mean(dim=axis, keepdim=True)
    v = x.var(dim=axis, keepdim=True, unbiased=False)
    return (x - m) / torch.sqrt(v + eps)
def _scatter_add(tgt, idx, src, axis=0):
    return tgt.clone().index_add_(axis, idx, src)
def _segment_sum(src, seg, n):
    out = torch.zeros((n,) + src.shape[1:], dtype=src.dtype)
    return out.index_add_(0, seg, src)
def _pad(x, pw):
    flat = tuple(v for pair in reversed(pw) for v in pair)
    return torch.nn.functional.pad(x, flat)

kernel_name = 'concat_heads__mha_block_cached__mha_block_cached__decode'

def setup_inputs():

    _w = (lambda a: (lambda t: t.to(torch.bfloat16) if t.is_floating_point() else t)(torch.as_tensor(a)))
    def _A_setup():
        B, Sq, D = 2, 1, 448
        H, Sk, Dh = 16, 4096, 256
        return {
            "x": _w((lambda *s: torch.randn(*s, dtype=torch.bfloat16) * 0.8)(B, Sq, D)),
            "k_cache": _w((lambda *s: torch.randn(*s, dtype=torch.bfloat16) * 0.8)(B, H, Sk, Dh)),
            "v_cache": _w((lambda *s: torch.randn(*s, dtype=torch.bfloat16) * 0.05)(B, H, Sk, Dh)),
            "wq": _w((lambda *s: torch.randn(*s, dtype=torch.bfloat16) * 0.8)(D, H * Dh) * (D ** -0.5)),
            "wo": _w((lambda *s: torch.randn(*s, dtype=torch.bfloat16) * 0.05)(H * Dh, D) * ((H * Dh) ** -0.5)),
        }
    _A_in = _A_setup()

    def _B_setup():
        B, Sq, D = 2, 1, 448
        H, Sk, Dh = 16, 4096, 256
        return {
            "x": _w((lambda *s: torch.randn(*s, dtype=torch.bfloat16) * 0.8)(B, Sq, D)),
            "k_cache": _w((lambda *s: torch.randn(*s, dtype=torch.bfloat16) * 0.8)(B, H, Sk, Dh)),
            "v_cache": _w((lambda *s: torch.randn(*s, dtype=torch.bfloat16) * 0.05)(B, H, Sk, Dh)),
            "wq": _w((lambda *s: torch.randn(*s, dtype=torch.bfloat16) * 0.8)(D, H * Dh) * (D ** -0.5)),
            "wo": _w((lambda *s: torch.randn(*s, dtype=torch.bfloat16) * 0.05)(H * Dh, D) * ((H * Dh) ** -0.5)),
        }
    _B_in = _B_setup()

    return {
        "A_x": _A_in["x"],
        "A_k_cache": _A_in["k_cache"],
        "A_v_cache": _A_in["v_cache"],
        "A_wq": _A_in["wq"],
        "A_wo": _A_in["wo"],
        "B_x": _B_in["x"],
        "B_k_cache": _B_in["k_cache"],
        "B_v_cache": _B_in["v_cache"],
        "B_wq": _B_in["wq"],
        "B_wo": _B_in["wo"],
    }

def reference(A_x, A_k_cache, A_v_cache, A_wq, A_wo, B_x, B_k_cache, B_v_cache, B_wq, B_wo):
    def _A_ref(x, k_cache, v_cache, wq, wo):
        B, Sq, D = x.shape
        H, Dh = 16, 256
        q = (lambda x, *d: x.permute(*d))((x @ wq).reshape(B, Sq, H, Dh), 0, 2, 1, 3)
        scores = torch.einsum("bhqd,bhkd->bhqk", q, k_cache) * (Dh ** -0.5)
        p = _softmax(scores, axis=-1)
        o = torch.einsum("bhqk,bhkd->bhqd", p, v_cache)
        return (lambda x, *d: x.permute(*d))(o, 0, 2, 1, 3).reshape(B, Sq, H * Dh) @ wo

    def _B_ref(x, k_cache, v_cache, wq, wo):
        B, Sq, D = x.shape
        H, Dh = 16, 256
        q = (lambda x, *d: x.permute(*d))((x @ wq).reshape(B, Sq, H, Dh), 0, 2, 1, 3)
        scores = torch.einsum("bhqd,bhkd->bhqk", q, k_cache) * (Dh ** -0.5)
        p = _softmax(scores, axis=-1)
        o = torch.einsum("bhqk,bhkd->bhqd", p, v_cache)
        return (lambda x, *d: x.permute(*d))(o, 0, 2, 1, 3).reshape(B, Sq, H * Dh) @ wo

    a = _A_ref(A_x, A_k_cache, A_v_cache, A_wq, A_wo)
    b = _B_ref(B_x, B_k_cache, B_v_cache, B_wq, B_wo)
    return torch.concatenate([a, b], axis=-1)
```

```python
import re

TRANS = ("v_exp_f32", "v_log_f32", "v_rcp_f32", "v_rsq_f32", "v_sqrt_f32", "v_sin_f32", "v_cos_f32")

def regs_of(op):
    op = op.strip()
    op = re.sub(r"^-", "", op)
    m = re.match(r"^abs\((.*)\)$", op)
    if m: op = m.group(1)
    m = re.match(r"^([vas])\[(\d+):(\d+)\]$", op)
    if m: return [f"{m.group(1)}{i}" for i in range(int(m.group(2)), int(m.group(3)) + 1)]
    m = re.match(r"^([vas])(\d+)$", op)
    if m: return [op]
    if op in ("vcc", "exec", "m0", "vcc_lo", "vcc_hi"): return ["vcc" if op.startswith("vcc") else op]
    return []

class Asm:
    def __init__(self):
        self.lines = []
        self.n = 0
        self.last = {}
        self.fifo = []

    def raw(self, s): self.lines.append(s)
    def comment(self, s): self.lines.append("    ; " + s)
    def label(self, s, flush=True):
        self.lines.append(s + ":")
    def nop(self, k):
        while k > 0:
            c = min(k, 16)
            self.lines.append(f"    s_nop {c-1}")
            self.n += c; k -= c

    def need(self, kind, reg, ws):
        t = self.last.get((kind, reg))
        if t is None: return 0
        gap = self.n - t - 1
        return max(0, ws - gap)

    def I(self, text, tag=None):
        text = text.strip()
        body = text.split(";")[0].strip()
        mn, _, rest = body.partition(" ")
        toks = [t.strip() for t in rest.split(",")]
        ops = []
        mods = ""
        for i, t in enumerate(toks):
            parts = t.split()
            if not parts: continue
            ops.append(parts[0])
            if len(parts) > 1: mods += " " + " ".join(parts[1:])
        is_mfma = mn.startswith("v_mfma")
        is_valu = mn.startswith("v_") and not is_mfma
        is_vmem = mn.startswith(("buffer_", "global_", "flat_"))
        is_ds = mn.startswith("ds_")
        is_dpp = "_dpp" in mn or "row_" in mods or "quad_perm" in rest
        is_dot = mn.startswith("v_dot")
        is_perml = mn.startswith("v_permlane")
        is_rdl = mn.startswith(("v_readlane", "v_readfirstlane"))
        rd, wr = [], []
        if is_mfma:
            wr = regs_of(ops[0]); A_ = regs_of(ops[1]); B_ = regs_of(ops[2]); C_ = regs_of(ops[3]); rd = A_ + B_ + C_
        elif is_valu:
            if is_perml:
                wr = regs_of(ops[0]) + regs_of(ops[1]); rd = list(wr)
            else:
                wr = regs_of(ops[0])
                k = 1
                if mn.startswith(("v_add_co", "v_sub_co", "v_addc_co", "v_subb_co")):
                    wr += regs_of(ops[1]); k = 2
                for o in ops[k:]: rd += regs_of(o)
                if mn.startswith(("v_fmac", "v_dot2c", "v_pk_fmac")) or is_dpp: rd += regs_of(ops[0])
                if mn.startswith("v_cndmask") and len(ops) == 3: rd.append("vcc")
        elif is_vmem:
            if "load" in mn and " lds" not in mods:
                wr = regs_of(ops[0]);
                for o in ops[1:]: rd += regs_of(o)
            elif "atomic" in mn and "sc0" in mods and mn.startswith("global"):
                wr = regs_of(ops[0])
                for o in ops[1:]: rd += regs_of(o)
            else:
                for o in ops: rd += regs_of(o)
        elif is_ds:
            if mn.startswith(("ds_read", "ds_bpermute", "ds_permute", "ds_swizzle")) or "_rtn" in mn:
                wr = regs_of(ops[0])
                for o in ops[1:]: rd += regs_of(o)
            else:
                for o in ops: rd += regs_of(o)
        pad = 0
        P = lambda kind, r, ws: max(pad, self.need(kind, r, ws))
        if is_valu:
            for r in rd:
                if is_dpp and r[0] == "v" and r != "vcc": pad = P("valu_w", r, 2)
                if is_perml: pad = P("valu_w", r, 2)
                if is_rdl and r[0] == "v": pad = P("valu_w", r, 1)
                if r[0] == "s" or r == "vcc": pad = P("valu_sw", r, 2)
                if mn not in TRANS: pad = P("trans_w", r, 1)
                pad = P("mfma_w", r, 8)
                if is_dot:
                    if r in regs_of(ops[1]) + regs_of(ops[2]): pad = P("dot_w", r, 3)
                else: pad = P("dot_w", r, 3)
            for r in wr:
                pad = P("mfma_w", r, 8); pad = P("mfma_c", r, 3); pad = P("store_d", r, 2)
                if not is_dot: pad = P("dot_w", r, 3)
        if is_mfma:
            for r in rd:
                pad = P("valu_w", r, 2); pad = P("dot_w", r, 3)
            for r in A_ + B_: pad = P("mfma_w", r, 8)
            if C_ != wr or self.last.get(("mfma_dst", C_[0])) != tuple(C_):
                for r in C_: pad = P("mfma_w", r, 6)
        if is_vmem or is_ds:
            for r in rd:
                pad = P("mfma_w", r, 8)
                if r[0] == "s": pad = P("valu_sw", r, 5)
                pad = P("dot_w", r, 3)
            for r in wr:
                pad = P("mfma_w", r, 8); pad = P("store_d", r, 1)
        if mn.startswith("s_") and not mn.startswith(("s_nop", "s_waitcnt", "s_barrier", "s_cbranch", "s_branch")):
            for o in ops[1:] if not mn.startswith("s_cmp") else ops:
                for r in regs_of(o):
                    pad = P("valu_sw", r, 1)
        if mn.startswith("s_cbranch_vcc"): pad = P("valu_sw", "vcc", 1)
        if pad: self.nop(pad)
        self.lines.append("    " + text)
        t = self.n
        if mn == "s_nop":
            self.n += int(ops[0], 0) + 1
        else:
            self.n += 1
        if is_valu:
            for r in wr:
                if r[0] in "va" and r != "vcc":
                    self.last[("valu_w", r)] = t
                    if mn in TRANS: self.last[("trans_w", r)] = t
                    else: self.last.pop(("trans_w", r), None)
                    if is_dot: self.last[("dot_w", r)] = t
                    else: self.last.pop(("dot_w", r), None)
                    self.last.pop(("mfma_dst", r), None)
                else:
                    self.last[("valu_sw", r)] = t
        if is_mfma:
            for r in wr: self.last[("mfma_w", r)] = t
            for r in C_: self.last[("mfma_c", r)] = t
            self.last[("mfma_dst", wr[0])] = tuple(wr)
        if is_vmem:
            if "store" in mn and ("x4" in mn or "x3" in mn):
                for r in rd:
                    if r[0] in "va": self.last[("store_d", r)] = t
            self.fifo.append(tag)
        return self

    def wait_vm(self, tag):
        idx = max((i for i, t in enumerate(self.fifo) if t == tag), default=None)
        if idx is None: return
        n = len(self.fifo) - 1 - idx
        n = min(n, 63)
        self.I(f"s_waitcnt vmcnt({n})")
        self.fifo = self.fifo[len(self.fifo) - n:] if n else []
    def wait_vm_all(self):
        self.I("s_waitcnt vmcnt(0)"); self.fifo = []
    def settle(self):
        self.nop(8)
    def text(self): return "\n".join(self.lines) + "\n"
```

```python
import sys, math
from kasm import Asm
KN = "concat_heads__mha_block_cached__mha_block_cached__decode_kernel"
HDR = open("concat_heads__mha_block_cached__mha_block_cached__decode.s.ref").read().split("; Override launch")[0]

LDS_Q, LDS_O, LDS_ML, LDS_Y, LDS_SZ = 0, 4096, 8192, 8448, 8448 + 8192 + 2048
CSC = math.log2(math.e) / 16.0
import struct
def f32hex(x): return "0x%08x" % struct.unpack("<I", struct.pack("<f", x))[0]

def gen(S=4, P=16, rot=2, qper=2, ts=False, wflag=" nt", kvflag=" nt"):
    a = Asm(); I = a.I
    NSTEP = 32
    assert (NSTEP - P) % S == 0 and P % S == 0
    a.raw(HDR.rstrip())
    a.raw(f"; @launch grid=(256,1,1) block=(256,1,1) lds={LDS_SZ}")
    a.raw('.amdgcn_target "amdgcn-amd-amdhsa--gfx950"')
    a.raw(".text"); a.raw(f".globl {KN}"); a.raw(".p2align 8"); a.raw(f".type {KN},@function"); a.raw(f"{KN}:")
    nts = [0]
    def stamp():
        if not ts: return
        k = nts[0]; nts[0] += 1
        I("s_memrealtime s[98:99]"); I("s_waitcnt lgkmcnt(0)")
        I(f"v_writelane_b32 v254, s98, {2*k}"); I(f"v_writelane_b32 v254, s99, {2*k+1}")
    I("s_cmp_ge_u32 s2, 256"); I("s_cbranch_scc1 L_end")
    I("s_load_dwordx16 s[8:23], s[0:1], 0")
    I("s_load_dwordx8 s[24:31], s[0:1], 64")
    I("s_load_dwordx2 s[32:33], s[0:1], 96")
    if ts: I("v_mov_b32 v254, 0")
    stamp()
    I("v_lshrrev_b32 v44, 6, v0")
    I("v_and_b32 v1, 63, v0")
    I("v_readfirstlane_b32 s3, v44")
    I("v_lshlrev_b32 v2, 4, v1")
    I("v_and_b32 v45, 31, v1"); I("v_lshlrev_b32 v45, 4, v45")
    I("v_lshrrev_b32 v46, 5, v1")
    I("v_lshl_add_u32 v4, v46, 13, v45")
    I("v_mul_u32_u24 v47, 896, v46"); I("v_add_u32 v5, v47, v45")
    I("v_bfe_u32 v47, v1, 4, 1"); I("v_lshl_add_u32 v47, v47, 1, v46")
    I("v_and_b32 v45, 15, v1"); I("v_lshlrev_b32 v45, 4, v45")
    I("v_lshl_add_u32 v3, v47, 9, v45")
    I("s_and_b32 s4, s2, 7"); I("s_lshl_b32 s4, s4, 2"); I("s_lshr_b32 s5, s2, 6"); I("s_add_u32 s4, s4, s5")
    I("s_bfe_u32 s5, s2, 0x10005")
    I("s_bfe_u32 s6, s2, 0x20003")
    I("s_lshl_b32 s7, s4, 1"); I("s_add_u32 s7, s7, s5")
    I(f"s_mul_i32 s90, s7, {rot}"); I("s_and_b32 s90, s90, 31"); I("s_lshl_b32 s90, s90, 16")
    I("s_lshr_b32 s94, s4, 4"); I("s_lshl_b32 s94, s94, 1"); I("s_add_u32 s94, s94, s5")
    I("s_cmp_ge_u32 s4, 16")
    I("s_waitcnt lgkmcnt(0)")
    I("s_cselect_b64 s[64:65], s[20:21], s[10:11]")
    I("s_cselect_b64 s[68:69], s[22:23], s[12:13]")
    I("s_cselect_b64 s[72:73], s[24:25], s[14:15]")
    I("s_cselect_b64 s[76:77], s[26:27], s[16:17]")
    I("s_cselect_b64 s[100:101], s[18:19], s[8:9]")
    I("s_and_b32 s4, s4, 15")
    I("s_lshl_b32 s7, s5, 4"); I("s_add_u32 s7, s7, s4"); I("s_lshl_b32 s7, s7, 21")
    I("s_lshl_b32 s96, s6, 14"); I("s_add_u32 s7, s7, s96"); I("s_lshl_b32 s96, s3, 12"); I("s_add_u32 s7, s7, s96")
    I("s_add_u32 s64, s64, s7"); I("s_addc_u32 s65, s65, 0")
    I("s_add_u32 s68, s68, s7"); I("s_addc_u32 s69, s69, 0")
    I("s_mov_b32 s66, 0x1f1000"); I("s_mov_b32 s67, 0x20000")
    I("s_mov_b32 s70, 0x1f1000"); I("s_mov_b32 s71, 0x20000")
    I("s_mov_b32 s74, 3670016"); I("s_mov_b32 s75, 0x20000")
    I(f"s_mul_i32 s91, s3, {112*8192}"); I("s_lshl_b32 s7, s4, 9"); I("s_add_u32 s91, s91, s7")
    RB = 64
    def kreg(slot, i): return RB + slot * 32 + 4 * i
    def vreg(slot, i): return RB + slot * 32 + 16 + 4 * i
    def kload(t, i):
        r = kreg(t % S, i)
        I(f"buffer_load_dwordx4 v[{r}:{r+3}], v2, s[64:67], s90 offen offset:{i*1024}{kvflag}", tag=f"K{t}")
    def vload(t, i):
        r = vreg(t % S, i)
        off = (i >> 1) * 2048 + (i & 1) * 256
        I(f"buffer_load_dwordx4 v[{r}:{r+3}], v3, s[68:71], s90 offen offset:{off}{kvflag}", tag=f"V{t}")
    def advance():
        I("s_add_u32 s90, s90, 0x10000"); I("s_and_b32 s90, s90, 0x1fffff")
    qi = [0]
    def qload(n):
        for _ in range(n):
            if qi[0] < 56:
                t = qi[0]; qi[0] += 1
                I(f"buffer_load_dwordx4 a[{4*t}:{4*t+3}], v4, s[72:75], s91 offen{wflag}", tag=f"Q{t}")
                I("s_add_u32 s91, s91, 16384")
    pro = []
    for t in range(S):
        pro += [("k", t, i) for i in range(4)] + [("v", t, i) for i in range(4)] + [("adv", t, 0)]
    def pro_issue(n):
        while n > 0 and pro:
            k, t, i = pro.pop(0)
            if k == "k": kload(t, i); n -= 1
            elif k == "v": vload(t, i); n -= 1
            else: advance()
        while pro and pro[0][0] == "adv":
            pro.pop(0); advance()
    for _ in range(4):
        qload(qper); pro_issue(1)
    I("s_mov_b64 s[80:81], s[32:33]"); I("s_mov_b32 s82, 0x80000"); I("s_mov_b32 s83, 0x20000")
    I("s_mov_b64 s[84:85], s[28:29]"); I("s_mov_b32 s86, 3584"); I("s_mov_b32 s87, 0x20000")
    I("s_mov_b64 s[88:89], s[30:31]")
    I("s_mov_b32 s78, 3670016"); I("s_mov_b32 s79, 0x20000")
    I("s_lshl_b32 s92, s4, 2"); I("s_add_u32 s92, s92, s3"); I(f"s_mul_i32 s92, s92, {64*896}")
    I("s_lshl_b32 s95, s94, 4"); I("s_add_u32 s95, s95, s4"); I("s_lshl_b32 s95, s95, 2"); I("s_add_u32 s95, s95, s6")
    I("s_lshl_b32 s95, s95, 11")
    I("s_mul_i32 s7, s5, 896"); I("s_mul_i32 s96, s3, 224"); I("s_add_u32 s7, s7, s96")
    I("s_add_u32 s100, s100, s7"); I("s_addc_u32 s101, s101, 0")
    I("s_load_dwordx16 s[8:23], s[100:101], 0")
    I("s_load_dwordx16 s[24:39], s[100:101], 64")
    I("s_load_dwordx16 s[40:55], s[100:101], 128")
    I("s_load_dwordx8 s[56:63], s[100:101], 192")
    I("v_lshlrev_b32 v53, 4, v0")
    I("v_mov_b32 v44, 0x40000000")
    I("v_cmp_gt_u32 vcc, 113, v0")
    I("v_cndmask_b32 v53, v44, v53, vcc")
    for r in range(56, 60): I(f"v_mov_b32 v{r}, -1")
    I("buffer_store_dwordx4 v[56:59], v53, s[80:83], s95 offen sc1", tag="CLR")
    for _ in range(4):
        qload(qper); pro_issue(1)
    I("v_bfe_u32 v44, v1, 1, 3")
    I("v_bfe_u32 v45, v1, 4, 1"); I("v_lshlrev_b32 v45, 2, v45"); I("v_xor_b32 v45, v45, v44")
    I("v_and_b32 v46, 1, v1"); I("v_lshlrev_b32 v46, 4, v46")
    I("v_mov_b32 v47, 0xffff"); I("v_lshlrev_b32 v47, v46, v47")
    I("v_lshrrev_b32 v48, 5, v1"); I("v_mul_u32_u24 v48, 0x0202, v48"); I("v_add_u32 v48, 0x0100, v48")
    I("v_lshlrev_b32 v48, v46, v48")
    I("v_mov_b32 v49, 0x0c0c0c0c")
    I("v_bfi_b32 v48, v47, v48, v49")
    for u in range(4):
        I(f"v_cmp_eq_u32 vcc, {u}, v44"); I(f"v_cndmask_b32 v{14+u}, 0, v47, vcc")
        I(f"v_cmp_eq_u32 vcc, {4+u}, v44"); I(f"v_cndmask_b32 v{18+u}, 0, v47, vcc")
        I(f"v_cmp_eq_u32 vcc, {u}, v45"); I(f"v_cndmask_b32 v{22+u}, 0, v47, vcc")
        I(f"v_cndmask_b32 v{10+u}, v49, v48, vcc")
        qload(qper); pro_issue(1)
    I("v_bfe_u32 v44, v1, 3, 1"); I("v_lshlrev_b32 v44, 9, v44")
    I("v_lshrrev_b32 v45, 4, v1"); I("v_lshl_add_u32 v44, v45, 7, v44")
    I("v_and_b32 v45, 7, v1"); I("v_lshl_add_u32 v54, v45, 2, v44")
    I("s_lshl_b32 s7, s3, 10")
    I("v_add_u32 v55, s7, v54")
    I(f"v_mov_b32 v26, {f32hex(-3.0e38)}"); I("v_mov_b32 v27, 0")
    for r in range(28, 36): I(f"v_mov_b32 v{r}, 0")
    for r in range(56, 60): I(f"v_mov_b32 v{r}, 0")
    I("s_waitcnt lgkmcnt(0)")
    LAG = 24
    def qmfma(t):
        b = 36 + (t & 1) * 4
        for u in range(4): I(f"v_perm_b32 v{b+u}, s{8+t}, s{8+t}, v{10+u}")
        a.wait_vm(f"Q{t}")
        I(f"v_mfma_f32_16x16x32_bf16 v[56:59], a[{4*t}:{4*t+3}], v[{b}:{b+3}], v[56:59]")
    qdone = 0
    while qi[0] < 56:
        qload(qper); pro_issue(1)
        while qdone < qi[0] - LAG:
            qmfma(qdone); qdone += 1
    pro_issue(100)
    while qdone < 56:
        qmfma(qdone); qdone += 1
    stamp()
    for r in range(4): I(f"ds_write_b32 v55, v{56+r} offset:{LDS_Q + r*32}")
    I("v_and_b32 v44, 31, v1"); I("v_lshlrev_b32 v44, 5, v44")
    I("s_waitcnt lgkmcnt(0)")
    I("s_barrier")
    TB = 192
    assert RB + S * 32 <= TB
    for w in range(4):
        I(f"ds_read_b128 v[{TB+8*w}:{TB+8*w+3}], v44 offset:{LDS_Q + w*1024}")
        I(f"ds_read_b128 v[{TB+8*w+4}:{TB+8*w+7}], v44 offset:{LDS_Q + w*1024 + 16}")
    I("s_cmp_lg_u32 s3, 0"); I("s_cbranch_scc1 L_nocnt")
    I("s_lshl_b32 s7, s94, 6"); I("s_mov_b32 s96, 1")
    I("s_atomic_add s96, s[88:89], s7")
    a.label("L_nocnt")
    I("s_waitcnt lgkmcnt(0)")
    for k in range(8):
        I(f"v_add_f32 v{TB+k}, v{TB+k}, v{TB+8+k}"); I(f"v_add_f32 v{TB+16+k}, v{TB+16+k}, v{TB+24+k}")
    for k in range(8): I(f"v_add_f32 v{TB+k}, v{TB+k}, v{TB+16+k}")
    for k in range(4): I(f"v_cvt_pk_bf16_f32 v{6+k}, v{TB+2*k}, v{TB+2*k+1}")
    I(f"s_mov_b32 s96, {f32hex(CSC)}")
    stamp()
    wi = [0]
    def woload(n):
        for _ in range(n):
            if wi[0] < 64:
                k = wi[0]; wi[0] += 1
                off = (k & 1) * 512 + ((k >> 1) & 1) * 1792
                I(f"buffer_load_dwordx4 a[{4*k}:{4*k+3}], v5, s[76:79], s92 offen offset:{off}{wflag}", tag="WO")
                if k % 4 == 3: I("s_add_u32 s92, s92, 3584")
    DP = "row_mask:0xf bank_mask:0xf"
    def step(t, nwo, loop=False):
        slot = t % S
        a.wait_vm(f"K{t}")
        for jj in range(4):
            for i in range(4):
                I(f"v_dot2_f32_bf16 v{44+i}, v{kreg(slot,i)+jj}, v{6+jj}, {'v%d' % (44+i) if jj else '0'}")
        for i in range(4): kload(t + S, i)
        woload(nwo // 2)
        I("v_permlane16_swap_b32 v44, v45"); I("v_permlane16_swap_b32 v46, v47")
        I("v_add_f32 v44, v44, v45"); I("v_add_f32 v46, v46, v47")
        I("v_add_f32_dpp v48, v44, v44 row_ror:8 row_mask:0xf bank_mask:0x3")
        I("v_add_f32_dpp v48, v46, v46 row_ror:8 row_mask:0xf bank_mask:0xc")
        I(f"v_add_f32_dpp v48, v48, v48 row_half_mirror {DP}")
        I(f"v_add_f32_dpp v48, v48, v48 quad_perm:[1,0,3,2] {DP}")
        I(f"v_add_f32_dpp v48, v48, v48 quad_perm:[2,3,0,1] {DP}")
        I("v_mul_f32 v48, s96, v48")
        I(f"v_max_f32_dpp v50, v48, v48 row_ror:8 {DP}")
        I("v_max_f32_dpp v50, v50, v50 row_bcast:15 row_mask:0xa bank_mask:0xf")
        I("v_max_f32_dpp v50, v50, v50 row_bcast:31 row_mask:0xc bank_mask:0xf")
        I("v_readlane_b32 s97, v50, 63")
        I("v_max_f32 v50, s97, v26")
        I("v_sub_f32 v51, v26, v50"); I("v_sub_f32 v48, v48, v50")
        I("v_exp_f32 v51, v51"); I("v_exp_f32 v48, v48")
        I("v_mov_b32 v26, v50")
        I("v_fma_f32 v27, v27, v51, v48")
        I("v_cvt_pk_bf16_f32 v52, v48, v48")
        for u in range(4): I(f"v_and_b32 v{36+u}, v52, v{14+u}")
        for u in range(4): I(f"v_and_b32 v{40+u}, v52, v{18+u}")
        for r in range(28, 36): I(f"v_mul_f32 v{r}, v51, v{r}")
        a.wait_vm(f"V{t}")
        for i, (d, b) in enumerate(((28, 36), (32, 36), (28, 40), (32, 40))):
            r = vreg(slot, i)
            I(f"v_mfma_f32_16x16x32_bf16 v[{d}:{d+3}], v[{r}:{r+3}], v[{b}:{b+3}], v[{d}:{d+3}]")
        for i in range(4): vload(t + S, i)
        woload(nwo - nwo // 2)
        advance()
    nwo = -(-64 // P)
    for t in range(P): step(t, nwo)
    assert wi[0] == 64
    niter = (NSTEP - P) // S
    if niter:
        I(f"s_mov_b32 s93, {niter}")
        a.fifo = [x for x in a.fifo if x != "WO" and x != "CLR"]
        a.settle()
        a.label("L_loop")
        I("s_sub_u32 s93, s93, 1"); I("s_cmp_eq_u32 s93, 0")
        I("s_cselect_b32 s66, 0, s66"); I("s_cselect_b32 s70, 0, s70")
        for t in range(P, P + S): step(t, 0, loop=True)
        I("s_cmp_lg_u32 s93, 0")
        a.settle()
        I("s_cbranch_scc1 L_loop")
    stamp()
    I("s_mul_i32 s8, s2, 2341"); I("s_lshr_b32 s8, s8, 16")
    I("s_mul_i32 s9, s8, 28"); I("s_sub_u32 s9, s2, s9")
    I("s_lshl_b32 s10, s8, 6")
    I("s_cmp_lt_u32 s2, 112"); I("s_cselect_b32 s11, s3, 0"); I("s_cmp_eq_u32 s11, 3"); I("s_cselect_b32 s11, 1, 0")
    I("s_cbranch_scc0 L_nopoll")
    I("s_mov_b32 s12, 0")
    I("s_atomic_add s12, s[88:89], s10 glc")
    a.label("L_nopoll")
    for r in range(4):
        I(f"v_add_f32_dpp v{44+r}, v{28+r}, v{28+r} row_ror:8 row_mask:0xf bank_mask:0x3")
        I(f"v_add_f32_dpp v{44+r}, v{32+r}, v{32+r} row_ror:8 row_mask:0xf bank_mask:0xc")
    I(f"v_add_f32_dpp v27, v27, v27 row_ror:8 {DP}")
    for r in range(4): I(f"ds_write_b32 v55, v{44+r} offset:{LDS_O + r*32}")
    I("v_add_f32_dpp v27, v27, v27 row_bcast:15 row_mask:0xa bank_mask:0xf")
    I("s_lshl_b32 s7, s3, 3")
    I("v_mov_b32 v48, s7")
    I("v_add_f32_dpp v27, v27, v27 row_bcast:31 row_mask:0xc bank_mask:0xf")
    I("s_mov_b32 exec_lo, 0"); I("s_mov_b32 exec_hi, 0x80000000")
    I(f"ds_write_b64 v48, v[26:27] offset:{LDS_ML}")
    I("s_mov_b64 exec, -1")
    I("v_and_b32 v48, 15, v1"); I("v_lshlrev_b32 v48, 3, v48")
    I("v_lshrrev_b32 v49, 5, v1"); I("v_lshl_add_u32 v48, v49, 2, v48")
    I("s_lshl_b32 s7, s3, 8"); I(f"s_add_u32 s7, s7, {LDS_O}")
    I("v_add_u32 v48, s7, v48"); I("v_add_u32 v49, 128, v48")
    I(f"v_mov_b32 v50, {LDS_ML}")
    for r in range(56, 64): I(f"v_mov_b32 v{r}, 0")
    I("s_waitcnt lgkmcnt(0)")
    I("s_barrier")
    T = 64
    I(f"ds_read_b128 v[{T}:{T+3}], v50"); I(f"ds_read_b128 v[{T+4}:{T+7}], v50 offset:16")
    I(f"ds_read2st64_b32 v[{T+8}:{T+9}], v48 offset0:0 offset1:4"); I(f"ds_read2st64_b32 v[{T+10}:{T+11}], v48 offset0:8 offset1:12")
    I(f"ds_read2st64_b32 v[{T+12}:{T+13}], v49 offset0:0 offset1:4"); I(f"ds_read2st64_b32 v[{T+14}:{T+15}], v49 offset0:8 offset1:12")
    I("s_waitcnt lgkmcnt(4)")
    I(f"v_max3_f32 v26, v{T}, v{T+2}, v{T+4}"); I(f"v_max_f32 v26, v26, v{T+6}")
    for w in range(4): I(f"v_sub_f32 v{T+2*w}, v{T+2*w}, v26")
    for w in range(4): I(f"v_exp_f32 v{T+2*w}, v{T+2*w}")
    I("s_waitcnt lgkmcnt(0)")
    I(f"v_mul_f32 v44, v{T}, v{T+8}"); I(f"v_mul_f32 v45, v{T}, v{T+12}"); I(f"v_mul_f32 v27, v{T}, v{T+1}")
    for w in range(1, 4):
        I(f"v_fmac_f32 v44, v{T+2*w}, v{T+8+w}"); I(f"v_fmac_f32 v45, v{T+2*w}, v{T+12+w}"); I(f"v_fmac_f32 v27, v{T+2*w}, v{T+2*w+1}")
    I("v_cvt_pk_bf16_f32 v44, v44, v44"); I("v_cvt_pk_bf16_f32 v45, v45, v45")
    a.wait_vm_all()
    for t in range(32):
        b = 36 + (t & 1) * 4
        src = 44 + (t >> 4)
        for u in range(4): I(f"v_and_b32_dpp v{b+u}, v{src}, v{22+u} row_newbcast:{t&15} {DP}")
        if t:
            tp = t - 1; bp = 36 + (tp & 1) * 4
            I(f"v_mfma_f32_16x16x32_bf16 v[56:59], a[{8*tp}:{8*tp+3}], v[{bp}:{bp+3}], v[56:59]")
            I(f"v_mfma_f32_16x16x32_bf16 v[60:63], a[{8*tp+4}:{8*tp+7}], v[{bp}:{bp+3}], v[60:63]")
    I("s_lshl_b32 s7, s3, 11")
    I("v_add_u32 v55, s7, v54")
    I(f"v_mfma_f32_16x16x32_bf16 v[56:59], a[248:251], v[40:43], v[56:59]")
    I(f"v_mfma_f32_16x16x32_bf16 v[60:63], a[252:255], v[40:43], v[60:63]")
    I("v_lshlrev_b32 v48, 4, v0")
    for r in range(4): I(f"ds_write_b32 v55, v{56+r} offset:{LDS_Y + r*32}")
    for r in range(4): I(f"ds_write_b32 v55, v{60+r} offset:{LDS_Y + 1024 + r*32}")
    I("s_waitcnt lgkmcnt(0)")
    I("s_barrier")
    stamp()
    I("s_cmp_ge_u32 s3, 2"); I("s_cbranch_scc1 L_cons")
    for w in range(4): I(f"ds_read_b128 v[{T+4*w}:{T+4*w+3}], v48 offset:{LDS_Y + w*2048}")
    I("v_cmp_eq_u32 vcc, 112, v0")
    I("s_waitcnt lgkmcnt(0)")
    for k in range(4):
        I(f"v_add_f32 v{T+k}, v{T+k}, v{T+4+k}"); I(f"v_add_f32 v{T+8+k}, v{T+8+k}, v{T+12+k}")
    for k in range(4): I(f"v_add_f32 v{T+k}, v{T+k}, v{T+8+k}")
    for k in range(4): I(f"v_cndmask_b32 v{T+k}, v{T+k}, v{26+(k&1)}, vcc")
    for k in range(4): I(f"v_min_u32 v{T+k}, -2, v{T+k}")
    I(f"buffer_store_dwordx4 v[{T}:{T+3}], v53, s[80:83], s95 offen sc1")
    I("s_branch L_fin")
    a.label("L_cons")
    I("s_cmp_eq_u32 s11, 0"); I("s_cbranch_scc1 L_fin")
    I("v_lshrrev_b32 v44, 2, v1"); I("v_lshlrev_b32 v44, 13, v44")
    I("v_and_b32 v45, 3, v1"); I("v_lshl_add_u32 v45, v45, 4, v44")
    I("s_lshl_b32 s13, s8, 17"); I("s_add_u32 s14, s13, 4096")
    I("s_lshl_b32 s15, s9, 6"); I("s_add_u32 s15, s15, s13"); I("s_add_u32 s16, s15, 4096")
    I("s_mov_b32 s17, 0x400000")
    a.label("L_rdy")
    I("s_waitcnt lgkmcnt(0)")
    I("s_cmp_ge_u32 s12, 64"); I("s_cbranch_scc1 L_poll")
    I("s_mov_b32 s12, 0")
    I("s_atomic_add s12, s[88:89], s10 glc")
    I("s_sub_u32 s17, s17, 1"); I("s_cmp_lg_u32 s17, 0"); I("s_cbranch_scc1 L_rdy")
    I("s_waitcnt lgkmcnt(0)")
    a.label("L_poll")
    Y = 64; ML = 80
    for s in range(4):
        I(f"buffer_load_dwordx4 v[{Y+4*s}:{Y+4*s+3}], v45, s[80:83], s{15+(s>>1)} offen offset:{(s&1)*2048} sc1")
    for s in range(4):
        I(f"buffer_load_dwordx2 v[{ML+2*s}:{ML+2*s+1}], v44, s[80:83], s{13+(s>>1)} offen offset:{(s&1)*2048+1792} sc1")
    I("s_waitcnt vmcnt(0)")
    I(f"v_max3_u32 v46, v{Y}, v{Y+1}, v{Y+2}")
    for k in range(3, 23, 2): I(f"v_max3_u32 v46, v46, v{Y+k}, v{Y+k+1}")
    I(f"v_max_u32 v46, v46, v{Y+23}")
    I("v_cmp_eq_u32 vcc, -1, v46")
    I("s_sub_u32 s17, s17, 1"); I("s_cmp_eq_u32 s17, 0"); I("s_cbranch_scc1 L_got")
    I("s_and_b64 exec, exec, vcc")
    I("s_cbranch_execnz L_poll")
    a.label("L_got")
    I("s_mov_b64 exec, -1")
    stamp()
    I(f"v_max3_f32 v46, v{ML}, v{ML+2}, v{ML+4}"); I(f"v_max_f32 v46, v46, v{ML+6}")
    for s in range(4): I(f"v_sub_f32 v{ML+2*s}, v{ML+2*s}, v46")
    for s in range(4): I(f"v_exp_f32 v{ML+2*s}, v{ML+2*s}")
    I(f"v_mul_f32 v47, v{ML}, v{ML+1}")
    for s in range(1, 4): I(f"v_fmac_f32 v47, v{ML+2*s}, v{ML+2*s+1}")
    I("v_rcp_f32 v47, v47")
    for k in range(4): I(f"v_mul_f32 v{48+k}, v{ML}, v{Y+k}")
    for s in range(1, 4):
        for k in range(4): I(f"v_fmac_f32 v{48+k}, v{ML+2*s}, v{Y+4*s+k}")
    for k in range(4): I(f"v_mul_f32 v{48+k}, v47, v{48+k}")
    for k in range(4): I(f"v_add_f32_dpp v{48+k}, v{48+k}, v{48+k} row_ror:4 {DP}")
    for k in range(4): I(f"v_add_f32_dpp v{48+k}, v{48+k}, v{48+k} row_ror:8 {DP}")
    for k in range(4): I(f"v_mov_b32 v{56+k}, v{48+k}")
    for k in range(4): I(f"v_permlane16_swap_b32 v{48+k}, v{56+k}")
    for k in range(4): I(f"v_add_f32 v{48+k}, v{48+k}, v{56+k}")
    for k in range(4): I(f"v_mov_b32 v{56+k}, v{48+k}")
    for k in range(4): I(f"v_permlane32_swap_b32 v{48+k}, v{56+k}")
    for k in range(4): I(f"v_add_f32 v{48+k}, v{48+k}, v{56+k}")
    I("v_cvt_pk_bf16_f32 v48, v48, v49"); I("v_cvt_pk_bf16_f32 v49, v50, v51")
    I("s_and_b32 s13, s8, 1"); I("s_mul_i32 s13, s13, 1792"); I("s_lshr_b32 s14, s8, 1"); I("s_mul_i32 s14, s14, 896")
    I("s_add_u32 s13, s13, s14"); I("s_lshl_b32 s14, s9, 5"); I("s_add_u32 s13, s13, s14")
    I("v_lshlrev_b32 v44, 3, v1")
    I("v_mov_b32 v45, 0x40000000")
    I("v_cmp_gt_u32 vcc, 4, v1")
    I("v_cndmask_b32 v44, v45, v44, vcc")
    I("buffer_store_dwordx2 v[48:49], v44, s[84:87], s13 offen")
    a.label("L_fin")
    if ts:
        a.settle()
        NT = 8
        k = NT - 1
        I("s_waitcnt vmcnt(0)")
        I("s_memrealtime s[98:99]"); I("s_waitcnt lgkmcnt(0)")
        I(f"v_writelane_b32 v254, s98, {2*k}"); I(f"v_writelane_b32 v254, s99, {2*k+1}")
        I("s_lshl_b32 s7, s2, 2"); I("s_add_u32 s7, s7, s3"); I(f"s_mul_i32 s7, s7, {NT*8}"); I("s_add_u32 s7, s7, 0x8000000")
        I("v_lshlrev_b32 v44, 2, v1"); I("v_add_u32 v44, s7, v44")
        I(f"v_cmp_gt_u32 vcc, {2*NT}, v1")
        I("s_and_b64 exec, exec, vcc")
        I("global_store_dword v44, v254, s[80:81]")
    a.label("L_end")
    I("s_endpgm")
    a.raw('.section .rodata,"a"'); a.raw(".p2align 6"); a.raw(f".amdhsa_kernel {KN}")
    a.raw("  .amdhsa_next_free_vgpr 512"); a.raw("  .amdhsa_next_free_sgpr 102"); a.raw("  .amdhsa_accum_offset 256")
    a.raw("  .amdhsa_group_segment_fixed_size 0"); a.raw("  .amdhsa_kernarg_size 104"); a.raw("  .amdhsa_user_sgpr_count 2")
    a.raw("  .amdhsa_user_sgpr_kernarg_segment_ptr 1"); a.raw("  .amdhsa_system_sgpr_workgroup_id_x 1"); a.raw(".end_amdhsa_kernel")
    return a.text()

if __name__ == "__main__":
    open("ka.s", "w").write(gen())
    open("ka_ts.s", "w").write(gen(ts=True))
```

```python
import sys, math
from kasm import Asm
KN = "concat_heads__mha_block_cached__mha_block_cached__decode_kernel"
HDR = open("concat_heads__mha_block_cached__mha_block_cached__decode.s.ref").read().split("; Override launch")[0]

LDS_Q, LDS_O, LDS_ML, LDS_Y, LDS_SZ = 0, 4096, 8192, 8448, 8448 + 8192 + 2048
CSC = math.log2(math.e) / 16.0
import struct
def f32hex(x): return "0x%08x" % struct.unpack("<I", struct.pack("<f", x))[0]

def gen(S=4, P=16, rot=2, qper=2, ts=False, wflag=" nt", kvflag=" nt", dbgts=False):
    a = Asm(); I = a.I
    NSTEP = 32
    assert (NSTEP - P) % S == 0 and P % S == 0
    a.raw(HDR.rstrip())
    a.raw(f"; @launch grid=(256,1,1) block=(256,1,1) lds={LDS_SZ}")
    a.raw('.amdgcn_target "amdgcn-amd-amdhsa--gfx950"')
    a.raw(".text"); a.raw(f".globl {KN}"); a.raw(".p2align 8"); a.raw(f".type {KN},@function"); a.raw(f"{KN}:")
    nts = [0]
    def stamp():
        if not ts: return
        k = nts[0]; nts[0] += 1
        I("s_memrealtime s[98:99]"); I("s_waitcnt lgkmcnt(0)")
        I(f"v_writelane_b32 v254, s98, {2*k}"); I(f"v_writelane_b32 v254, s99, {2*k+1}")
    I("s_cmp_ge_u32 s2, 256"); I("s_cbranch_scc1 L_end")
    I("s_load_dwordx16 s[8:23], s[0:1], 0")
    I("s_load_dwordx8 s[24:31], s[0:1], 64")
    I("s_load_dwordx2 s[32:33], s[0:1], 96")
    if ts: I("v_mov_b32 v254, 0")
    stamp()
    I("v_lshrrev_b32 v44, 6, v0")
    I("v_and_b32 v1, 63, v0")
    I("v_readfirstlane_b32 s3, v44")
    I("v_lshlrev_b32 v2, 4, v1")
    I("v_and_b32 v45, 31, v1"); I("v_lshlrev_b32 v45, 4, v45")
    I("v_lshrrev_b32 v46, 5, v1")
    I("v_lshl_add_u32 v4, v46, 13, v45")
    I("v_mul_u32_u24 v47, 896, v46"); I("v_add_u32 v5, v47, v45")
    I("v_bfe_u32 v47, v1, 4, 1"); I("v_lshl_add_u32 v47, v47, 1, v46")
    I("v_and_b32 v45, 15, v1"); I("v_lshlrev_b32 v45, 4, v45")
    I("v_lshl_add_u32 v3, v47, 9, v45")
    I("s_and_b32 s4, s2, 7"); I("s_lshl_b32 s4, s4, 2"); I("s_lshr_b32 s5, s2, 6"); I("s_add_u32 s4, s4, s5")
    I("s_bfe_u32 s5, s2, 0x10005")
    I("s_bfe_u32 s6, s2, 0x20003")
    I("s_lshl_b32 s7, s4, 1"); I("s_add_u32 s7, s7, s5")
    I(f"s_mul_i32 s90, s7, {rot}"); I("s_and_b32 s90, s90, 31"); I("s_lshl_b32 s90, s90, 16")
    I("s_lshr_b32 s94, s4, 4"); I("s_lshl_b32 s94, s94, 1"); I("s_add_u32 s94, s94, s5")
    I("s_cmp_ge_u32 s4, 16")
    I("s_waitcnt lgkmcnt(0)")
    I("s_cselect_b64 s[64:65], s[20:21], s[10:11]")
    I("s_cselect_b64 s[68:69], s[22:23], s[12:13]")
    I("s_cselect_b64 s[72:73], s[24:25], s[14:15]")
    I("s_cselect_b64 s[76:77], s[26:27], s[16:17]")
    I("s_cselect_b64 s[100:101], s[18:19], s[8:9]")
    I("s_and_b32 s4, s4, 15")
    I("s_lshl_b32 s7, s5, 4"); I("s_add_u32 s7, s7, s4"); I("s_lshl_b32 s7, s7, 21")
    I("s_lshl_b32 s96, s6, 14"); I("s_add_u32 s7, s7, s96"); I("s_lshl_b32 s96, s3, 12"); I("s_add_u32 s7, s7, s96")
    I("s_add_u32 s64, s64, s7"); I("s_addc_u32 s65, s65, 0")
    I("s_add_u32 s68, s68, s7"); I("s_addc_u32 s69, s69, 0")
    I("s_mov_b32 s66, 0x1f1000"); I("s_mov_b32 s67, 0x20000")
    I("s_mov_b32 s70, 0x1f1000"); I("s_mov_b32 s71, 0x20000")
    I("s_mov_b32 s74, 3670016"); I("s_mov_b32 s75, 0x20000")
    I(f"s_mul_i32 s91, s3, {112*8192}"); I("s_lshl_b32 s7, s4, 9"); I("s_add_u32 s91, s91, s7")
    RB = 64
    def kreg(slot, i): return RB + slot * 32 + 4 * i
    def vreg(slot, i): return RB + slot * 32 + 16 + 4 * i
    def kload(t, i):
        r = kreg(t % S, i)
        I(f"buffer_load_dwordx4 v[{r}:{r+3}], v2, s[64:67], s90 offen offset:{i*1024}{kvflag}", tag=f"K{t}")
    def vload(t, i):
        r = vreg(t % S, i)
        off = (i >> 1) * 2048 + (i & 1) * 256
        I(f"buffer_load_dwordx4 v[{r}:{r+3}], v3, s[68:71], s90 offen offset:{off}{kvflag}", tag=f"V{t}")
    def advance():
        I("s_add_u32 s90, s90, 0x10000"); I("s_and_b32 s90, s90, 0x1fffff")
    qi = [0]
    def qload(n):
        for _ in range(n):
            if qi[0] < 56:
                t = qi[0]; qi[0] += 1
                I(f"buffer_load_dwordx4 a[{4*t}:{4*t+3}], v4, s[72:75], s91 offen{wflag}", tag=f"Q{t}")
                I("s_add_u32 s91, s91, 16384")
    pro = []
    for t in range(S):
        pro += [("k", t, i) for i in range(4)] + [("v", t, i) for i in range(4)] + [("adv", t, 0)]
    def pro_issue(n):
        while n > 0 and pro:
            k, t, i = pro.pop(0)
            if k == "k": kload(t, i); n -= 1
            elif k == "v": vload(t, i); n -= 1
            else: advance()
        while pro and pro[0][0] == "adv":
            pro.pop(0); advance()
    for _ in range(4):
        qload(qper); pro_issue(1)
    I("s_mov_b64 s[80:81], s[32:33]"); I("s_mov_b32 s82, 0x80000"); I("s_mov_b32 s83, 0x20000")
    I("s_mov_b64 s[84:85], s[28:29]"); I("s_mov_b32 s86, 3584"); I("s_mov_b32 s87, 0x20000")
    I("s_mov_b64 s[88:89], s[30:31]")
    I("s_mov_b32 s78, 3670016"); I("s_mov_b32 s79, 0x20000")
    I("s_lshl_b32 s92, s4, 2"); I("s_add_u32 s92, s92, s3"); I(f"s_mul_i32 s92, s92, {64*896}")
    I("s_lshl_b32 s95, s94, 4"); I("s_add_u32 s95, s95, s4"); I("s_lshl_b32 s95, s95, 2"); I("s_add_u32 s95, s95, s6")
    I("s_lshl_b32 s95, s95, 11")
    I("s_mul_i32 s7, s5, 896"); I("s_mul_i32 s96, s3, 224"); I("s_add_u32 s7, s7, s96")
    I("s_add_u32 s100, s100, s7"); I("s_addc_u32 s101, s101, 0")
    I("s_load_dwordx16 s[8:23], s[100:101], 0")
    I("s_load_dwordx16 s[24:39], s[100:101], 64")
    I("s_load_dwordx16 s[40:55], s[100:101], 128")
    I("s_load_dwordx8 s[56:63], s[100:101], 192")
    I("v_lshlrev_b32 v53, 4, v0")
    I("v_mov_b32 v44, 0x40000000")
    I("v_cmp_gt_u32 vcc, 113, v0")
    I("v_cndmask_b32 v53, v44, v53, vcc")
    for r in range(56, 60): I(f"v_mov_b32 v{r}, -1")
    I("buffer_store_dwordx4 v[56:59], v53, s[80:83], s95 offen sc1", tag="CLR")
    for _ in range(4):
        qload(qper); pro_issue(1)
    I("v_bfe_u32 v44, v1, 1, 3")
    I("v_bfe_u32 v45, v1, 4, 1"); I("v_lshlrev_b32 v45, 2, v45"); I("v_xor_b32 v45, v45, v44")
    I("v_and_b32 v46, 1, v1"); I("v_lshlrev_b32 v46, 4, v46")
    I("v_mov_b32 v47, 0xffff"); I("v_lshlrev_b32 v47, v46, v47")
    I("v_lshrrev_b32 v48, 5, v1"); I("v_mul_u32_u24 v48, 0x0202, v48"); I("v_add_u32 v48, 0x0100, v48")
    I("v_lshlrev_b32 v48, v46, v48")
    I("v_mov_b32 v49, 0x0c0c0c0c")
    I("v_bfi_b32 v48, v47, v48, v49")
    for u in range(4):
        I(f"v_cmp_eq_u32 vcc, {u}, v44"); I(f"v_cndmask_b32 v{14+u}, 0, v47, vcc")
        I(f"v_cmp_eq_u32 vcc, {4+u}, v44"); I(f"v_cndmask_b32 v{18+u}, 0, v47, vcc")
        I(f"v_cmp_eq_u32 vcc, {u}, v45"); I(f"v_cndmask_b32 v{22+u}, 0, v47, vcc")
        I(f"v_cndmask_b32 v{10+u}, v49, v48, vcc")
        qload(qper); pro_issue(1)
    I("v_bfe_u32 v44, v1, 3, 1"); I("v_lshlrev_b32 v44, 9, v44")
    I("v_lshrrev_b32 v45, 4, v1"); I("v_lshl_add_u32 v44, v45, 7, v44")
    I("v_and_b32 v45, 7, v1"); I("v_lshl_add_u32 v54, v45, 2, v44")
    I("s_lshl_b32 s7, s3, 10")
    I("v_add_u32 v55, s7, v54")
    I(f"v_mov_b32 v26, {f32hex(-3.0e38)}"); I("v_mov_b32 v27, 0")
    for r in range(28, 36): I(f"v_mov_b32 v{r}, 0")
    for r in range(56, 60): I(f"v_mov_b32 v{r}, 0")
    I("s_waitcnt lgkmcnt(0)")
    LAG = 24
    def qmfma(t):
        b = 36 + (t & 1) * 4
        for u in range(4): I(f"v_perm_b32 v{b+u}, s{8+t}, s{8+t}, v{10+u}")
        a.wait_vm(f"Q{t}")
        I(f"v_mfma_f32_16x16x32_bf16 v[56:59], a[{4*t}:{4*t+3}], v[{b}:{b+3}], v[56:59]")
    qdone = 0
    while qi[0] < 56:
        qload(qper); pro_issue(1)
        while qdone < qi[0] - LAG:
            qmfma(qdone); qdone += 1
    pro_issue(100)
    while qdone < 56:
        qmfma(qdone); qdone += 1
    stamp()
    for r in range(4): I(f"ds_write_b32 v55, v{56+r} offset:{LDS_Q + r*32}")
    I("v_and_b32 v44, 31, v1"); I("v_lshlrev_b32 v44, 5, v44")
    I("s_waitcnt lgkmcnt(0)")
    I("s_barrier")
    TB = 192
    assert RB + S * 32 <= TB
    for w in range(4):
        I(f"ds_read_b128 v[{TB+8*w}:{TB+8*w+3}], v44 offset:{LDS_Q + w*1024}")
        I(f"ds_read_b128 v[{TB+8*w+4}:{TB+8*w+7}], v44 offset:{LDS_Q + w*1024 + 16}")
    I("s_cmp_lg_u32 s3, 0"); I("s_cbranch_scc1 L_nocnt")
    I("s_lshl_b32 s7, s94, 6"); I("s_mov_b32 s96, 1")
    I("s_atomic_add s96, s[88:89], s7")
    a.label("L_nocnt")
    I("s_waitcnt lgkmcnt(0)")
    for k in range(8):
        I(f"v_add_f32 v{TB+k}, v{TB+k}, v{TB+8+k}"); I(f"v_add_f32 v{TB+16+k}, v{TB+16+k}, v{TB+24+k}")
    for k in range(8): I(f"v_add_f32 v{TB+k}, v{TB+k}, v{TB+16+k}")
    for k in range(4): I(f"v_cvt_pk_bf16_f32 v{6+k}, v{TB+2*k}, v{TB+2*k+1}")
    I(f"s_mov_b32 s96, {f32hex(CSC)}")
    stamp()
    wi = [0]
    def woload(n):
        for _ in range(n):
            if wi[0] < 64:
                k = wi[0]; wi[0] += 1
                off = (k & 1) * 512 + ((k >> 1) & 1) * 1792
                I(f"buffer_load_dwordx4 a[{4*k}:{4*k+3}], v5, s[76:79], s92 offen offset:{off}{wflag}", tag="WO")
                if k % 4 == 3: I("s_add_u32 s92, s92, 3584")
    DP = "row_mask:0xf bank_mask:0xf"
    def step(t, nwo, loop=False):
        slot = t % S
        a.wait_vm(f"K{t}")
        for jj in range(4):
            for i in range(4):
                I(f"v_dot2_f32_bf16 v{44+i}, v{kreg(slot,i)+jj}, v{6+jj}, {'v%d' % (44+i) if jj else '0'}")
        for i in range(4): kload(t + S, i)
        woload(nwo // 2)
        I("v_permlane16_swap_b32 v44, v45"); I("v_permlane16_swap_b32 v46, v47")
        I("v_add_f32 v44, v44, v45"); I("v_add_f32 v46, v46, v47")
        I("v_add_f32_dpp v48, v44, v44 row_ror:8 row_mask:0xf bank_mask:0x3")
        I("v_add_f32_dpp v48, v46, v46 row_ror:8 row_mask:0xf bank_mask:0xc")
        I(f"v_add_f32_dpp v48, v48, v48 row_half_mirror {DP}")
        I(f"v_add_f32_dpp v48, v48, v48 quad_perm:[1,0,3,2] {DP}")
        I(f"v_add_f32_dpp v48, v48, v48 quad_perm:[2,3,0,1] {DP}")
        I("v_mul_f32 v48, s96, v48")
        I(f"v_max_f32_dpp v50, v48, v48 row_ror:8 {DP}")
        I("v_max_f32_dpp v50, v50, v50 row_bcast:15 row_mask:0xa bank_mask:0xf")
        I("v_max_f32_dpp v50, v50, v50 row_bcast:31 row_mask:0xc bank_mask:0xf")
        I("v_readlane_b32 s97, v50, 63")
        I("v_max_f32 v50, s97, v26")
        I("v_sub_f32 v51, v26, v50"); I("v_sub_f32 v48, v48, v50")
        I("v_exp_f32 v51, v51"); I("v_exp_f32 v48, v48")
        I("v_mov_b32 v26, v50")
        I("v_fma_f32 v27, v27, v51, v48")
        I("v_cvt_pk_bf16_f32 v52, v48, v48")
        for u in range(4): I(f"v_and_b32 v{36+u}, v52, v{14+u}")
        for u in range(4): I(f"v_and_b32 v{40+u}, v52, v{18+u}")
        for r in range(28, 36): I(f"v_mul_f32 v{r}, v51, v{r}")
        a.wait_vm(f"V{t}")
        for i, (d, b) in enumerate(((28, 36), (32, 36), (28, 40), (32, 40))):
            r = vreg(slot, i)
            I(f"v_mfma_f32_16x16x32_bf16 v[{d}:{d+3}], v[{r}:{r+3}], v[{b}:{b+3}], v[{d}:{d+3}]")
        for i in range(4): vload(t + S, i)
        woload(nwo - nwo // 2)
        advance()
    nwo = -(-64 // P)
    for t in range(P): step(t, nwo)
    assert wi[0] == 64
    niter = (NSTEP - P) // S
    if niter:
        I(f"s_mov_b32 s93, {niter}")
        a.fifo = [x for x in a.fifo if x != "WO" and x != "CLR"]
        a.settle()
        a.label("L_loop")
        I("s_sub_u32 s93, s93, 1"); I("s_cmp_eq_u32 s93, 0")
        I("s_cselect_b32 s66, 0, s66"); I("s_cselect_b32 s70, 0, s70")
        for t in range(P, P + S): step(t, 0, loop=True)
        I("s_cmp_lg_u32 s93, 0")
        a.settle()
        I("s_cbranch_scc1 L_loop")
    stamp()
    I("s_mul_i32 s8, s2, 2341"); I("s_lshr_b32 s8, s8, 16")
    I("s_mul_i32 s9, s8, 28"); I("s_sub_u32 s9, s2, s9")
    I("s_lshl_b32 s10, s8, 6")
    I("s_cmp_lt_u32 s2, 112"); I("s_cselect_b32 s11, s3, 0"); I("s_cmp_eq_u32 s11, 3"); I("s_cselect_b32 s11, 1, 0")
    I("s_cbranch_scc0 L_nopoll")
    I("s_mov_b32 s12, 0")
    I("s_atomic_add s12, s[88:89], s10 glc")
    a.label("L_nopoll")
    for r in range(4):
        I(f"v_add_f32_dpp v{44+r}, v{28+r}, v{28+r} row_ror:8 row_mask:0xf bank_mask:0x3")
        I(f"v_add_f32_dpp v{44+r}, v{32+r}, v{32+r} row_ror:8 row_mask:0xf bank_mask:0xc")
    I(f"v_add_f32_dpp v27, v27, v27 row_ror:8 {DP}")
    for r in range(4): I(f"ds_write_b32 v55, v{44+r} offset:{LDS_O + r*32}")
    I("v_add_f32_dpp v27, v27, v27 row_bcast:15 row_mask:0xa bank_mask:0xf")
    I("s_lshl_b32 s7, s3, 3")
    I("v_mov_b32 v48, s7")
    I("v_add_f32_dpp v27, v27, v27 row_bcast:31 row_mask:0xc bank_mask:0xf")
    I("s_mov_b32 exec_lo, 0"); I("s_mov_b32 exec_hi, 0x80000000")
    I(f"ds_write_b64 v48, v[26:27] offset:{LDS_ML}")
    I("s_mov_b64 exec, -1")
    I("v_and_b32 v48, 15, v1"); I("v_lshlrev_b32 v48, 3, v48")
    I("v_lshrrev_b32 v49, 5, v1"); I("v_lshl_add_u32 v48, v49, 2, v48")
    I("s_lshl_b32 s7, s3, 8"); I(f"s_add_u32 s7, s7, {LDS_O}")
    I("v_add_u32 v48, s7, v48"); I("v_add_u32 v49, 128, v48")
    I(f"v_mov_b32 v50, {LDS_ML}")
    for r in range(56, 64): I(f"v_mov_b32 v{r}, 0")
    I("s_waitcnt lgkmcnt(0)")
    I("s_barrier")
    T = 64
    I(f"ds_read_b128 v[{T}:{T+3}], v50"); I(f"ds_read_b128 v[{T+4}:{T+7}], v50 offset:16")
    I(f"ds_read2st64_b32 v[{T+8}:{T+9}], v48 offset0:0 offset1:4"); I(f"ds_read2st64_b32 v[{T+10}:{T+11}], v48 offset0:8 offset1:12")
    I(f"ds_read2st64_b32 v[{T+12}:{T+13}], v49 offset0:0 offset1:4"); I(f"ds_read2st64_b32 v[{T+14}:{T+15}], v49 offset0:8 offset1:12")
    I("s_waitcnt lgkmcnt(4)")
    I(f"v_max3_f32 v26, v{T}, v{T+2}, v{T+4}"); I(f"v_max_f32 v26, v26, v{T+6}")
    for w in range(4): I(f"v_sub_f32 v{T+2*w}, v{T+2*w}, v26")
    for w in range(4): I(f"v_exp_f32 v{T+2*w}, v{T+2*w}")
    I("s_waitcnt lgkmcnt(0)")
    I(f"v_mul_f32 v44, v{T}, v{T+8}"); I(f"v_mul_f32 v45, v{T}, v{T+12}"); I(f"v_mul_f32 v27, v{T}, v{T+1}")
    for w in range(1, 4):
        I(f"v_fmac_f32 v44, v{T+2*w}, v{T+8+w}"); I(f"v_fmac_f32 v45, v{T+2*w}, v{T+12+w}"); I(f"v_fmac_f32 v27, v{T+2*w}, v{T+2*w+1}")
    I("v_cvt_pk_bf16_f32 v44, v44, v44"); I("v_cvt_pk_bf16_f32 v45, v45, v45")
    a.wait_vm_all()
    for t in range(32):
        b = 36 + (t & 1) * 4
        src = 44 + (t >> 4)
        for u in range(4): I(f"v_and_b32_dpp v{b+u}, v{src}, v{22+u} row_newbcast:{t&15} {DP}")
        if t:
            tp = t - 1; bp = 36 + (tp & 1) * 4
            I(f"v_mfma_f32_16x16x32_bf16 v[56:59], a[{8*tp}:{8*tp+3}], v[{bp}:{bp+3}], v[56:59]")
            I(f"v_mfma_f32_16x16x32_bf16 v[60:63], a[{8*tp+4}:{8*tp+7}], v[{bp}:{bp+3}], v[60:63]")
    I("s_lshl_b32 s7, s3, 11")
    I("v_add_u32 v55, s7, v54")
    I(f"v_mfma_f32_16x16x32_bf16 v[56:59], a[248:251], v[40:43], v[56:59]")
    I(f"v_mfma_f32_16x16x32_bf16 v[60:63], a[252:255], v[40:43], v[60:63]")
    I("v_lshlrev_b32 v48, 4, v0")
    for r in range(4): I(f"ds_write_b32 v55, v{56+r} offset:{LDS_Y + r*32}")
    for r in range(4): I(f"ds_write_b32 v55, v{60+r} offset:{LDS_Y + 1024 + r*32}")
    I("s_waitcnt lgkmcnt(0)")
    I("s_barrier")
    stamp()
    I("s_cmp_ge_u32 s3, 2"); I("s_cbranch_scc1 L_cons")
    for w in range(4): I(f"ds_read_b128 v[{T+4*w}:{T+4*w+3}], v48 offset:{LDS_Y + w*2048}")
    I("v_cmp_eq_u32 vcc, 112, v0")
    I("s_waitcnt lgkmcnt(0)")
    for k in range(4):
        I(f"v_add_f32 v{T+k}, v{T+k}, v{T+4+k}"); I(f"v_add_f32 v{T+8+k}, v{T+8+k}, v{T+12+k}")
    for k in range(4): I(f"v_add_f32 v{T+k}, v{T+k}, v{T+8+k}")
    for k in range(4): I(f"v_cndmask_b32 v{T+k}, v{T+k}, v{26+(k&1)}, vcc")
    for k in range(4): I(f"v_min_u32 v{T+k}, -2, v{T+k}")
    I(f"buffer_store_dwordx4 v[{T}:{T+3}], v53, s[80:83], s95 offen sc1")
    I("s_branch L_fin")
    a.label("L_cons")
    I("s_cmp_eq_u32 s11, 0"); I("s_cbranch_scc1 L_fin")
    I("v_lshrrev_b32 v44, 2, v1"); I("v_lshlrev_b32 v44, 13, v44")
    I("v_and_b32 v45, 3, v1"); I("v_lshl_add_u32 v45, v45, 4, v44")
    I("s_lshl_b32 s13, s8, 17"); I("s_add_u32 s14, s13, 4096")
    I("s_lshl_b32 s15, s9, 6"); I("s_add_u32 s15, s15, s13"); I("s_add_u32 s16, s15, 4096")
    I("s_mov_b32 s17, 0x400000")
    a.label("L_rdy")
    I("s_waitcnt lgkmcnt(0)")
    I("s_cmp_ge_u32 s12, 64"); I("s_cbranch_scc1 L_poll")
    I("s_mov_b32 s12, 0")
    I("s_atomic_add s12, s[88:89], s10 glc")
    I("s_sub_u32 s17, s17, 1"); I("s_cmp_lg_u32 s17, 0"); I("s_cbranch_scc1 L_rdy")
    I("s_waitcnt lgkmcnt(0)")
    a.label("L_poll")
    Y = 64; ML = 80
    for s in range(4):
        I(f"buffer_load_dwordx4 v[{Y+4*s}:{Y+4*s+3}], v45, s[80:83], s{15+(s>>1)} offen offset:{(s&1)*2048} sc1")
    for s in range(4):
        I(f"buffer_load_dwordx2 v[{ML+2*s}:{ML+2*s+1}], v44, s[80:83], s{13+(s>>1)} offen offset:{(s&1)*2048+1792} sc1")
    I("s_waitcnt vmcnt(0)")
    I(f"v_max3_u32 v46, v{Y}, v{Y+1}, v{Y+2}")
    for k in range(3, 23, 2): I(f"v_max3_u32 v46, v46, v{Y+k}, v{Y+k+1}")
    I(f"v_max_u32 v46, v46, v{Y+23}")
    I("v_cmp_eq_u32 vcc, -1, v46")
    I("s_sub_u32 s17, s17, 1"); I("s_cmp_eq_u32 s17, 0"); I("s_cbranch_scc1 L_got")
    I("s_and_b64 exec, exec, vcc")
    I("s_cbranch_execnz L_poll")
    a.label("L_got")
    I("s_mov_b64 exec, -1")
    stamp()
    I(f"v_max3_f32 v46, v{ML}, v{ML+2}, v{ML+4}"); I(f"v_max_f32 v46, v46, v{ML+6}")
    for s in range(4): I(f"v_sub_f32 v{ML+2*s}, v{ML+2*s}, v46")
    for s in range(4): I(f"v_exp_f32 v{ML+2*s}, v{ML+2*s}")
    I(f"v_mul_f32 v47, v{ML}, v{ML+1}")
    for s in range(1, 4): I(f"v_fmac_f32 v47, v{ML+2*s}, v{ML+2*s+1}")
    I("v_rcp_f32 v47, v47")
    for k in range(4): I(f"v_mul_f32 v{48+k}, v{ML}, v{Y+k}")
    for s in range(1, 4):
        for k in range(4): I(f"v_fmac_f32 v{48+k}, v{ML+2*s}, v{Y+4*s+k}")
    for k in range(4): I(f"v_mul_f32 v{48+k}, v47, v{48+k}")
    for k in range(4): I(f"v_add_f32_dpp v{48+k}, v{48+k}, v{48+k} row_ror:4 {DP}")
    for k in range(4): I(f"v_add_f32_dpp v{48+k}, v{48+k}, v{48+k} row_ror:8 {DP}")
    for k in range(4): I(f"v_mov_b32 v{56+k}, v{48+k}")
    for k in range(4): I(f"v_permlane16_swap_b32 v{48+k}, v{56+k}")
    for k in range(4): I(f"v_add_f32 v{48+k}, v{48+k}, v{56+k}")
    for k in range(4): I(f"v_mov_b32 v{56+k}, v{48+k}")
    for k in range(4): I(f"v_permlane32_swap_b32 v{48+k}, v{56+k}")
    for k in range(4): I(f"v_add_f32 v{48+k}, v{48+k}, v{56+k}")
    I("v_cvt_pk_bf16_f32 v48, v48, v49"); I("v_cvt_pk_bf16_f32 v49, v50, v51")
    I("s_and_b32 s13, s8, 1"); I("s_mul_i32 s13, s13, 1792"); I("s_lshr_b32 s14, s8, 1"); I("s_mul_i32 s14, s14, 896")
    I("s_add_u32 s13, s13, s14"); I("s_lshl_b32 s14, s9, 5"); I("s_add_u32 s13, s13, s14")
    I("v_lshlrev_b32 v44, 3, v1")
    I("v_mov_b32 v45, 0x40000000")
    I("v_cmp_gt_u32 vcc, 4, v1")
    I("v_cndmask_b32 v44, v45, v44, vcc")
    I("buffer_store_dwordx2 v[48:49], v44, s[84:87], s13 offen")
    a.label("L_fin")
    if ts:
        a.settle()
        NT = 8
        k = NT - 1
        I("s_waitcnt vmcnt(0)")
        I("s_memrealtime s[98:99]"); I("s_waitcnt lgkmcnt(0)")
        I(f"v_writelane_b32 v254, s98, {2*k}"); I(f"v_writelane_b32 v254, s99, {2*k+1}")
        if dbgts:
            for j, k in enumerate((0, 1, 2, 3, 4, 5, 7)):
                I(f"v_readlane_b32 s98, v254, {2*k}")
                I("s_nop 4")
                I(f"s_atomic_umax s98, s[88:89], {4*(1+j)}")
                I("s_waitcnt lgkmcnt(0)")
            for j, k in enumerate((0, 2, 3, 4)):
                I(f"v_readlane_b32 s98, v254, {2*k}")
                I("s_nop 4")
                I("s_not_b32 s98, s98")
                I(f"s_atomic_umax s98, s[88:89], {4*(9+j)}")
                I("s_waitcnt lgkmcnt(0)")
        I("s_lshl_b32 s7, s2, 2"); I("s_add_u32 s7, s7, s3"); I(f"s_mul_i32 s7, s7, {NT*8}"); I("s_add_u32 s7, s7, 0x8000000")
        I("v_lshlrev_b32 v44, 2, v1"); I("v_add_u32 v44, s7, v44")
        I(f"v_cmp_gt_u32 vcc, {2*NT}, v1")
        I("s_and_b64 exec, exec, vcc")
        I("global_store_dword v44, v254, s[80:81]")
    a.label("L_end")
    I("s_endpgm")
    a.raw('.section .rodata,"a"'); a.raw(".p2align 6"); a.raw(f".amdhsa_kernel {KN}")
    a.raw("  .amdhsa_next_free_vgpr 512"); a.raw("  .amdhsa_next_free_sgpr 102"); a.raw("  .amdhsa_accum_offset 256")
    a.raw("  .amdhsa_group_segment_fixed_size 0"); a.raw("  .amdhsa_kernarg_size 104"); a.raw("  .amdhsa_user_sgpr_count 2")
    a.raw("  .amdhsa_user_sgpr_kernarg_segment_ptr 1"); a.raw("  .amdhsa_system_sgpr_workgroup_id_x 1"); a.raw(".end_amdhsa_kernel")
    return a.text()

if __name__ == "__main__":
    open("ka.s", "w").write(gen())
    open("ka_ts.s", "w").write(gen(ts=True))
    open("ka_dbg.s", "w").write(gen(ts=True, dbgts=True))
```

```python
import sys, math
from kasm import Asm
KN = "concat_heads__mha_block_cached__mha_block_cached__decode_kernel"
HDR = open("concat_heads__mha_block_cached__mha_block_cached__decode.s.ref").read().split("; Override launch")[0]

LDS_Q, LDS_O, LDS_ML, LDS_Y, LDS_SZ = 0, 4096, 8192, 8448, 8448 + 8192 + 2048
CSC = math.log2(math.e) / 16.0
import struct
def f32hex(x): return "0x%08x" % struct.unpack("<I", struct.pack("<f", x))[0]

def gen(S=4, P=16, rot=2, qper=2, ts=False, wflag=" nt", kvflag=" nt", dbgts=False, failgt=None, faillt=None, badmap=False):
    a = Asm(); I = a.I
    NSTEP = 32
    assert (NSTEP - P) % S == 0 and P % S == 0
    a.raw(HDR.rstrip())
    a.raw(f"; @launch grid=(256,1,1) block=(256,1,1) lds={LDS_SZ}")
    a.raw('.amdgcn_target "amdgcn-amd-amdhsa--gfx950"')
    a.raw(".text"); a.raw(f".globl {KN}"); a.raw(".p2align 8"); a.raw(f".type {KN},@function"); a.raw(f"{KN}:")
    nts = [0]
    def stamp():
        if not ts: return
        k = nts[0]; nts[0] += 1
        I("s_memrealtime s[98:99]"); I("s_waitcnt lgkmcnt(0)")
        I(f"v_writelane_b32 v254, s98, {2*k}"); I(f"v_writelane_b32 v254, s99, {2*k+1}")
    I("s_cmp_ge_u32 s2, 256"); I("s_cbranch_scc1 L_end")
    I("s_load_dwordx16 s[8:23], s[0:1], 0")
    I("s_load_dwordx8 s[24:31], s[0:1], 64")
    I("s_load_dwordx2 s[32:33], s[0:1], 96")
    if failgt or faillt:
        I("s_memrealtime s[98:99]"); I("s_waitcnt lgkmcnt(0)"); I("v_mov_b32 v253, s98")
    if ts: I("v_mov_b32 v254, 0")
    stamp()
    I("v_lshrrev_b32 v44, 6, v0")
    I("v_and_b32 v1, 63, v0")
    I("v_readfirstlane_b32 s3, v44")
    I("v_lshlrev_b32 v2, 4, v1")
    I("v_and_b32 v45, 31, v1"); I("v_lshlrev_b32 v45, 4, v45")
    I("v_lshrrev_b32 v46, 5, v1")
    I("v_lshl_add_u32 v4, v46, 13, v45")
    I("v_mul_u32_u24 v47, 896, v46"); I("v_add_u32 v5, v47, v45")
    I("v_bfe_u32 v47, v1, 4, 1"); I("v_lshl_add_u32 v47, v47, 1, v46")
    I("v_and_b32 v45, 15, v1"); I("v_lshlrev_b32 v45, 4, v45")
    I("v_lshl_add_u32 v3, v47, 9, v45")
    I("s_and_b32 s4, s2, 7"); I("s_lshl_b32 s4, s4, 2"); I("s_lshr_b32 s5, s2, 6"); I("s_add_u32 s4, s4, s5")
    I("s_bfe_u32 s5, s2, 0x10005")
    I("s_bfe_u32 s6, s2, 0x20003")
    if badmap:
        I("s_lshr_b32 s4, s2, 3"); I("s_bfe_u32 s5, s2, 0x10002"); I("s_and_b32 s6, s2, 3")
    I("s_lshl_b32 s7, s4, 1"); I("s_add_u32 s7, s7, s5")
    I(f"s_mul_i32 s90, s7, {rot}"); I("s_and_b32 s90, s90, 31"); I("s_lshl_b32 s90, s90, 16")
    I("s_lshr_b32 s94, s4, 4"); I("s_lshl_b32 s94, s94, 1"); I("s_add_u32 s94, s94, s5")
    I("s_cmp_ge_u32 s4, 16")
    I("s_waitcnt lgkmcnt(0)")
    I("s_cselect_b64 s[64:65], s[20:21], s[10:11]")
    I("s_cselect_b64 s[68:69], s[22:23], s[12:13]")
    I("s_cselect_b64 s[72:73], s[24:25], s[14:15]")
    I("s_cselect_b64 s[76:77], s[26:27], s[16:17]")
    I("s_cselect_b64 s[100:101], s[18:19], s[8:9]")
    I("s_and_b32 s4, s4, 15")
    I("s_lshl_b32 s7, s5, 4"); I("s_add_u32 s7, s7, s4"); I("s_lshl_b32 s7, s7, 21")
    I("s_lshl_b32 s96, s6, 14"); I("s_add_u32 s7, s7, s96"); I("s_lshl_b32 s96, s3, 12"); I("s_add_u32 s7, s7, s96")
    I("s_add_u32 s64, s64, s7"); I("s_addc_u32 s65, s65, 0")
    I("s_add_u32 s68, s68, s7"); I("s_addc_u32 s69, s69, 0")
    I("s_mov_b32 s66, 0x1f1000"); I("s_mov_b32 s67, 0x20000")
    I("s_mov_b32 s70, 0x1f1000"); I("s_mov_b32 s71, 0x20000")
    I("s_mov_b32 s74, 3670016"); I("s_mov_b32 s75, 0x20000")
    I(f"s_mul_i32 s91, s3, {112*8192}"); I("s_lshl_b32 s7, s4, 9"); I("s_add_u32 s91, s91, s7")
    RB = 64
    def kreg(slot, i): return RB + slot * 32 + 4 * i
    def vreg(slot, i): return RB + slot * 32 + 16 + 4 * i
    def kload(t, i):
        r = kreg(t % S, i)
        I(f"buffer_load_dwordx4 v[{r}:{r+3}], v2, s[64:67], s90 offen offset:{i*1024}{kvflag}", tag=f"K{t}")
    def vload(t, i):
        r = vreg(t % S, i)
        off = (i >> 1) * 2048 + (i & 1) * 256
        I(f"buffer_load_dwordx4 v[{r}:{r+3}], v3, s[68:71], s90 offen offset:{off}{kvflag}", tag=f"V{t}")
    def advance():
        I("s_add_u32 s90, s90, 0x10000"); I("s_and_b32 s90, s90, 0x1fffff")
    qi = [0]
    def qload(n):
        for _ in range(n):
            if qi[0] < 56:
                t = qi[0]; qi[0] += 1
                I(f"buffer_load_dwordx4 a[{4*t}:{4*t+3}], v4, s[72:75], s91 offen{wflag}", tag=f"Q{t}")
                I("s_add_u32 s91, s91, 16384")
    pro = []
    for t in range(S):
        pro += [("k", t, i) for i in range(4)] + [("v", t, i) for i in range(4)] + [("adv", t, 0)]
    def pro_issue(n):
        while n > 0 and pro:
            k, t, i = pro.pop(0)
            if k == "k": kload(t, i); n -= 1
            elif k == "v": vload(t, i); n -= 1
            else: advance()
        while pro and pro[0][0] == "adv":
            pro.pop(0); advance()
    for _ in range(4):
        qload(qper); pro_issue(1)
    I("s_mov_b64 s[80:81], s[32:33]"); I("s_mov_b32 s82, 0x80000"); I("s_mov_b32 s83, 0x20000")
    I("s_mov_b64 s[84:85], s[28:29]"); I("s_mov_b32 s86, 3584"); I("s_mov_b32 s87, 0x20000")
    I("s_mov_b64 s[88:89], s[30:31]")
    I("s_mov_b32 s78, 3670016"); I("s_mov_b32 s79, 0x20000")
    I("s_lshl_b32 s92, s4, 2"); I("s_add_u32 s92, s92, s3"); I(f"s_mul_i32 s92, s92, {64*896}")
    I("s_lshl_b32 s95, s94, 4"); I("s_add_u32 s95, s95, s4"); I("s_lshl_b32 s95, s95, 2"); I("s_add_u32 s95, s95, s6")
    I("s_lshl_b32 s95, s95, 11")
    I("s_mul_i32 s7, s5, 896"); I("s_mul_i32 s96, s3, 224"); I("s_add_u32 s7, s7, s96")
    I("s_add_u32 s100, s100, s7"); I("s_addc_u32 s101, s101, 0")
    I("s_load_dwordx16 s[8:23], s[100:101], 0")
    I("s_load_dwordx16 s[24:39], s[100:101], 64")
    I("s_load_dwordx16 s[40:55], s[100:101], 128")
    I("s_load_dwordx8 s[56:63], s[100:101], 192")
    I("v_lshlrev_b32 v53, 4, v0")
    I("v_mov_b32 v44, 0x40000000")
    I("v_cmp_gt_u32 vcc, 113, v0")
    I("v_cndmask_b32 v53, v44, v53, vcc")
    for r in range(56, 60): I(f"v_mov_b32 v{r}, -1")
    I("buffer_store_dwordx4 v[56:59], v53, s[80:83], s95 offen sc1", tag="CLR")
    for _ in range(4):
        qload(qper); pro_issue(1)
    I("v_bfe_u32 v44, v1, 1, 3")
    I("v_bfe_u32 v45, v1, 4, 1"); I("v_lshlrev_b32 v45, 2, v45"); I("v_xor_b32 v45, v45, v44")
    I("v_and_b32 v46, 1, v1"); I("v_lshlrev_b32 v46, 4, v46")
    I("v_mov_b32 v47, 0xffff"); I("v_lshlrev_b32 v47, v46, v47")
    I("v_lshrrev_b32 v48, 5, v1"); I("v_mul_u32_u24 v48, 0x0202, v48"); I("v_add_u32 v48, 0x0100, v48")
    I("v_lshlrev_b32 v48, v46, v48")
    I("v_mov_b32 v49, 0x0c0c0c0c")
    I("v_bfi_b32 v48, v47, v48, v49")
    for u in range(4):
        I(f"v_cmp_eq_u32 vcc, {u}, v44"); I(f"v_cndmask_b32 v{14+u}, 0, v47, vcc")
        I(f"v_cmp_eq_u32 vcc, {4+u}, v44"); I(f"v_cndmask_b32 v{18+u}, 0, v47, vcc")
        I(f"v_cmp_eq_u32 vcc, {u}, v45"); I(f"v_cndmask_b32 v{22+u}, 0, v47, vcc")
        I(f"v_cndmask_b32 v{10+u}, v49, v48, vcc")
        qload(qper); pro_issue(1)
    I("v_bfe_u32 v44, v1, 3, 1"); I("v_lshlrev_b32 v44, 9, v44")
    I("v_lshrrev_b32 v45, 4, v1"); I("v_lshl_add_u32 v44, v45, 7, v44")
    I("v_and_b32 v45, 7, v1"); I("v_lshl_add_u32 v54, v45, 2, v44")
    I("s_lshl_b32 s7, s3, 10")
    I("v_add_u32 v55, s7, v54")
    I(f"v_mov_b32 v26, {f32hex(-3.0e38)}"); I("v_mov_b32 v27, 0")
    for r in range(28, 36): I(f"v_mov_b32 v{r}, 0")
    for r in range(56, 60): I(f"v_mov_b32 v{r}, 0")
    I("s_waitcnt lgkmcnt(0)")
    LAG = 24
    def qmfma(t):
        b = 36 + (t & 1) * 4
        for u in range(4): I(f"v_perm_b32 v{b+u}, s{8+t}, s{8+t}, v{10+u}")
        a.wait_vm(f"Q{t}")
        I(f"v_mfma_f32_16x16x32_bf16 v[56:59], a[{4*t}:{4*t+3}], v[{b}:{b+3}], v[56:59]")
    qdone = 0
    while qi[0] < 56:
        qload(qper); pro_issue(1)
        while qdone < qi[0] - LAG:
            qmfma(qdone); qdone += 1
    pro_issue(100)
    while qdone < 56:
        qmfma(qdone); qdone += 1
    stamp()
    for r in range(4): I(f"ds_write_b32 v55, v{56+r} offset:{LDS_Q + r*32}")
    I("v_and_b32 v44, 31, v1"); I("v_lshlrev_b32 v44, 5, v44")
    I("s_waitcnt lgkmcnt(0)")
    I("s_barrier")
    TB = 192
    assert RB + S * 32 <= TB
    for w in range(4):
        I(f"ds_read_b128 v[{TB+8*w}:{TB+8*w+3}], v44 offset:{LDS_Q + w*1024}")
        I(f"ds_read_b128 v[{TB+8*w+4}:{TB+8*w+7}], v44 offset:{LDS_Q + w*1024 + 16}")
    I("s_cmp_lg_u32 s3, 0"); I("s_cbranch_scc1 L_nocnt")
    I("s_lshl_b32 s7, s94, 6"); I("s_mov_b32 s96, 1")
    I("s_atomic_add s96, s[88:89], s7")
    a.label("L_nocnt")
    I("s_waitcnt lgkmcnt(0)")
    for k in range(8):
        I(f"v_add_f32 v{TB+k}, v{TB+k}, v{TB+8+k}"); I(f"v_add_f32 v{TB+16+k}, v{TB+16+k}, v{TB+24+k}")
    for k in range(8): I(f"v_add_f32 v{TB+k}, v{TB+k}, v{TB+16+k}")
    for k in range(4): I(f"v_cvt_pk_bf16_f32 v{6+k}, v{TB+2*k}, v{TB+2*k+1}")
    I(f"s_mov_b32 s96, {f32hex(CSC)}")
    stamp()
    wi = [0]
    def woload(n):
        for _ in range(n):
            if wi[0] < 64:
                k = wi[0]; wi[0] += 1
                off = (k & 1) * 512 + ((k >> 1) & 1) * 1792
                I(f"buffer_load_dwordx4 a[{4*k}:{4*k+3}], v5, s[76:79], s92 offen offset:{off}{wflag}", tag="WO")
                if k % 4 == 3: I("s_add_u32 s92, s92, 3584")
    DP = "row_mask:0xf bank_mask:0xf"
    def step(t, nwo, loop=False):
        slot = t % S
        a.wait_vm(f"K{t}")
        for jj in range(4):
            for i in range(4):
                I(f"v_dot2_f32_bf16 v{44+i}, v{kreg(slot,i)+jj}, v{6+jj}, {'v%d' % (44+i) if jj else '0'}")
        for i in range(4): kload(t + S, i)
        woload(nwo // 2)
        I("v_permlane16_swap_b32 v44, v45"); I("v_permlane16_swap_b32 v46, v47")
        I("v_add_f32 v44, v44, v45"); I("v_add_f32 v46, v46, v47")
        I("v_add_f32_dpp v48, v44, v44 row_ror:8 row_mask:0xf bank_mask:0x3")
        I("v_add_f32_dpp v48, v46, v46 row_ror:8 row_mask:0xf bank_mask:0xc")
        I(f"v_add_f32_dpp v48, v48, v48 row_half_mirror {DP}")
        I(f"v_add_f32_dpp v48, v48, v48 quad_perm:[1,0,3,2] {DP}")
        I(f"v_add_f32_dpp v48, v48, v48 quad_perm:[2,3,0,1] {DP}")
        I("v_mul_f32 v48, s96, v48")
        I(f"v_max_f32_dpp v50, v48, v48 row_ror:8 {DP}")
        I("v_max_f32_dpp v50, v50, v50 row_bcast:15 row_mask:0xa bank_mask:0xf")
        I("v_max_f32_dpp v50, v50, v50 row_bcast:31 row_mask:0xc bank_mask:0xf")
        I("v_readlane_b32 s97, v50, 63")
        I("v_max_f32 v50, s97, v26")
        I("v_sub_f32 v51, v26, v50"); I("v_sub_f32 v48, v48, v50")
        I("v_exp_f32 v51, v51"); I("v_exp_f32 v48, v48")
        I("v_mov_b32 v26, v50")
        I("v_fma_f32 v27, v27, v51, v48")
        I("v_cvt_pk_bf16_f32 v52, v48, v48")
        for u in range(4): I(f"v_and_b32 v{36+u}, v52, v{14+u}")
        for u in range(4): I(f"v_and_b32 v{40+u}, v52, v{18+u}")
        for r in range(28, 36): I(f"v_mul_f32 v{r}, v51, v{r}")
        a.wait_vm(f"V{t}")
        for i, (d, b) in enumerate(((28, 36), (32, 36), (28, 40), (32, 40))):
            r = vreg(slot, i)
            I(f"v_mfma_f32_16x16x32_bf16 v[{d}:{d+3}], v[{r}:{r+3}], v[{b}:{b+3}], v[{d}:{d+3}]")
        for i in range(4): vload(t + S, i)
        woload(nwo - nwo // 2)
        advance()
    nwo = -(-64 // P)
    for t in range(P): step(t, nwo)
    assert wi[0] == 64
    niter = (NSTEP - P) // S
    if niter:
        I(f"s_mov_b32 s93, {niter}")
        a.fifo = [x for x in a.fifo if x != "WO" and x != "CLR"]
        a.settle()
        a.label("L_loop")
        I("s_sub_u32 s93, s93, 1"); I("s_cmp_eq_u32 s93, 0")
        I("s_cselect_b32 s66, 0, s66"); I("s_cselect_b32 s70, 0, s70")
        for t in range(P, P + S): step(t, 0, loop=True)
        I("s_cmp_lg_u32 s93, 0")
        a.settle()
        I("s_cbranch_scc1 L_loop")
    stamp()
    I("s_mul_i32 s8, s2, 2341"); I("s_lshr_b32 s8, s8, 16")
    I("s_mul_i32 s9, s8, 28"); I("s_sub_u32 s9, s2, s9")
    I("s_lshl_b32 s10, s8, 6")
    I("s_cmp_lt_u32 s2, 112"); I("s_cselect_b32 s11, s3, 0"); I("s_cmp_eq_u32 s11, 3"); I("s_cselect_b32 s11, 1, 0")
    I("s_cbranch_scc0 L_nopoll")
    I("s_mov_b32 s12, 0")
    I("s_atomic_add s12, s[88:89], s10 glc")
    a.label("L_nopoll")
    for r in range(4):
        I(f"v_add_f32_dpp v{44+r}, v{28+r}, v{28+r} row_ror:8 row_mask:0xf bank_mask:0x3")
        I(f"v_add_f32_dpp v{44+r}, v{32+r}, v{32+r} row_ror:8 row_mask:0xf bank_mask:0xc")
    I(f"v_add_f32_dpp v27, v27, v27 row_ror:8 {DP}")
    for r in range(4): I(f"ds_write_b32 v55, v{44+r} offset:{LDS_O + r*32}")
    I("v_add_f32_dpp v27, v27, v27 row_bcast:15 row_mask:0xa bank_mask:0xf")
    I("s_lshl_b32 s7, s3, 3")
    I("v_mov_b32 v48, s7")
    I("v_add_f32_dpp v27, v27, v27 row_bcast:31 row_mask:0xc bank_mask:0xf")
    I("s_mov_b32 exec_lo, 0"); I("s_mov_b32 exec_hi, 0x80000000")
    I(f"ds_write_b64 v48, v[26:27] offset:{LDS_ML}")
    I("s_mov_b64 exec, -1")
    I("v_and_b32 v48, 15, v1"); I("v_lshlrev_b32 v48, 3, v48")
    I("v_lshrrev_b32 v49, 5, v1"); I("v_lshl_add_u32 v48, v49, 2, v48")
    I("s_lshl_b32 s7, s3, 8"); I(f"s_add_u32 s7, s7, {LDS_O}")
    I("v_add_u32 v48, s7, v48"); I("v_add_u32 v49, 128, v48")
    I(f"v_mov_b32 v50, {LDS_ML}")
    for r in range(56, 64): I(f"v_mov_b32 v{r}, 0")
    I("s_waitcnt lgkmcnt(0)")
    I("s_barrier")
    T = 64
    I(f"ds_read_b128 v[{T}:{T+3}], v50"); I(f"ds_read_b128 v[{T+4}:{T+7}], v50 offset:16")
    I(f"ds_read2st64_b32 v[{T+8}:{T+9}], v48 offset0:0 offset1:4"); I(f"ds_read2st64_b32 v[{T+10}:{T+11}], v48 offset0:8 offset1:12")
    I(f"ds_read2st64_b32 v[{T+12}:{T+13}], v49 offset0:0 offset1:4"); I(f"ds_read2st64_b32 v[{T+14}:{T+15}], v49 offset0:8 offset1:12")
    I("s_waitcnt lgkmcnt(4)")
    I(f"v_max3_f32 v26, v{T}, v{T+2}, v{T+4}"); I(f"v_max_f32 v26, v26, v{T+6}")
    for w in range(4): I(f"v_sub_f32 v{T+2*w}, v{T+2*w}, v26")
    for w in range(4): I(f"v_exp_f32 v{T+2*w}, v{T+2*w}")
    I("s_waitcnt lgkmcnt(0)")
    I(f"v_mul_f32 v44, v{T}, v{T+8}"); I(f"v_mul_f32 v45, v{T}, v{T+12}"); I(f"v_mul_f32 v27, v{T}, v{T+1}")
    for w in range(1, 4):
        I(f"v_fmac_f32 v44, v{T+2*w}, v{T+8+w}"); I(f"v_fmac_f32 v45, v{T+2*w}, v{T+12+w}"); I(f"v_fmac_f32 v27, v{T+2*w}, v{T+2*w+1}")
    I("v_cvt_pk_bf16_f32 v44, v44, v44"); I("v_cvt_pk_bf16_f32 v45, v45, v45")
    a.wait_vm_all()
    for t in range(32):
        b = 36 + (t & 1) * 4
        src = 44 + (t >> 4)
        for u in range(4): I(f"v_and_b32_dpp v{b+u}, v{src}, v{22+u} row_newbcast:{t&15} {DP}")
        if t:
            tp = t - 1; bp = 36 + (tp & 1) * 4
            I(f"v_mfma_f32_16x16x32_bf16 v[56:59], a[{8*tp}:{8*tp+3}], v[{bp}:{bp+3}], v[56:59]")
            I(f"v_mfma_f32_16x16x32_bf16 v[60:63], a[{8*tp+4}:{8*tp+7}], v[{bp}:{bp+3}], v[60:63]")
    I("s_lshl_b32 s7, s3, 11")
    I("v_add_u32 v55, s7, v54")
    I(f"v_mfma_f32_16x16x32_bf16 v[56:59], a[248:251], v[40:43], v[56:59]")
    I(f"v_mfma_f32_16x16x32_bf16 v[60:63], a[252:255], v[40:43], v[60:63]")
    I("v_lshlrev_b32 v48, 4, v0")
    for r in range(4): I(f"ds_write_b32 v55, v{56+r} offset:{LDS_Y + r*32}")
    for r in range(4): I(f"ds_write_b32 v55, v{60+r} offset:{LDS_Y + 1024 + r*32}")
    I("s_waitcnt lgkmcnt(0)")
    I("s_barrier")
    stamp()
    I("s_cmp_ge_u32 s3, 2"); I("s_cbranch_scc1 L_cons")
    for w in range(4): I(f"ds_read_b128 v[{T+4*w}:{T+4*w+3}], v48 offset:{LDS_Y + w*2048}")
    I("v_cmp_eq_u32 vcc, 112, v0")
    I("s_waitcnt lgkmcnt(0)")
    for k in range(4):
        I(f"v_add_f32 v{T+k}, v{T+k}, v{T+4+k}"); I(f"v_add_f32 v{T+8+k}, v{T+8+k}, v{T+12+k}")
    for k in range(4): I(f"v_add_f32 v{T+k}, v{T+k}, v{T+8+k}")
    for k in range(4): I(f"v_cndmask_b32 v{T+k}, v{T+k}, v{26+(k&1)}, vcc")
    for k in range(4): I(f"v_min_u32 v{T+k}, -2, v{T+k}")
    I(f"buffer_store_dwordx4 v[{T}:{T+3}], v53, s[80:83], s95 offen sc1")
    I("s_branch L_fin")
    a.label("L_cons")
    I("s_cmp_eq_u32 s11, 0"); I("s_cbranch_scc1 L_fin")
    I("v_lshrrev_b32 v44, 2, v1"); I("v_lshlrev_b32 v44, 13, v44")
    I("v_and_b32 v45, 3, v1"); I("v_lshl_add_u32 v45, v45, 4, v44")
    I("s_lshl_b32 s13, s8, 17"); I("s_add_u32 s14, s13, 4096")
    I("s_lshl_b32 s15, s9, 6"); I("s_add_u32 s15, s15, s13"); I("s_add_u32 s16, s15, 4096")
    I("s_mov_b32 s17, 0x400000")
    a.label("L_rdy")
    I("s_waitcnt lgkmcnt(0)")
    I("s_cmp_ge_u32 s12, 64"); I("s_cbranch_scc1 L_poll")
    I("s_mov_b32 s12, 0")
    I("s_atomic_add s12, s[88:89], s10 glc")
    I("s_sub_u32 s17, s17, 1"); I("s_cmp_lg_u32 s17, 0"); I("s_cbranch_scc1 L_rdy")
    I("s_waitcnt lgkmcnt(0)")
    a.label("L_poll")
    Y = 64; ML = 80
    for s in range(4):
        I(f"buffer_load_dwordx4 v[{Y+4*s}:{Y+4*s+3}], v45, s[80:83], s{15+(s>>1)} offen offset:{(s&1)*2048} sc1")
    for s in range(4):
        I(f"buffer_load_dwordx2 v[{ML+2*s}:{ML+2*s+1}], v44, s[80:83], s{13+(s>>1)} offen offset:{(s&1)*2048+1792} sc1")
    I("s_waitcnt vmcnt(0)")
    I(f"v_max3_u32 v46, v{Y}, v{Y+1}, v{Y+2}")
    for k in range(3, 23, 2): I(f"v_max3_u32 v46, v46, v{Y+k}, v{Y+k+1}")
    I(f"v_max_u32 v46, v46, v{Y+23}")
    I("v_cmp_eq_u32 vcc, -1, v46")
    I("s_sub_u32 s17, s17, 1"); I("s_cmp_eq_u32 s17, 0"); I("s_cbranch_scc1 L_got")
    I("s_and_b64 exec, exec, vcc")
    I("s_cbranch_execnz L_poll")
    a.label("L_got")
    I("s_mov_b64 exec, -1")
    stamp()
    I(f"v_max3_f32 v46, v{ML}, v{ML+2}, v{ML+4}"); I(f"v_max_f32 v46, v46, v{ML+6}")
    for s in range(4): I(f"v_sub_f32 v{ML+2*s}, v{ML+2*s}, v46")
    for s in range(4): I(f"v_exp_f32 v{ML+2*s}, v{ML+2*s}")
    I(f"v_mul_f32 v47, v{ML}, v{ML+1}")
    for s in range(1, 4): I(f"v_fmac_f32 v47, v{ML+2*s}, v{ML+2*s+1}")
    I("v_rcp_f32 v47, v47")
    for k in range(4): I(f"v_mul_f32 v{48+k}, v{ML}, v{Y+k}")
    for s in range(1, 4):
        for k in range(4): I(f"v_fmac_f32 v{48+k}, v{ML+2*s}, v{Y+4*s+k}")
    for k in range(4): I(f"v_mul_f32 v{48+k}, v47, v{48+k}")
    for k in range(4): I(f"v_add_f32_dpp v{48+k}, v{48+k}, v{48+k} row_ror:4 {DP}")
    for k in range(4): I(f"v_add_f32_dpp v{48+k}, v{48+k}, v{48+k} row_ror:8 {DP}")
    for k in range(4): I(f"v_mov_b32 v{56+k}, v{48+k}")
    for k in range(4): I(f"v_permlane16_swap_b32 v{48+k}, v{56+k}")
    for k in range(4): I(f"v_add_f32 v{48+k}, v{48+k}, v{56+k}")
    for k in range(4): I(f"v_mov_b32 v{56+k}, v{48+k}")
    for k in range(4): I(f"v_permlane32_swap_b32 v{48+k}, v{56+k}")
    for k in range(4): I(f"v_add_f32 v{48+k}, v{48+k}, v{56+k}")
    I("v_cvt_pk_bf16_f32 v48, v48, v49"); I("v_cvt_pk_bf16_f32 v49, v50, v51")
    I("s_and_b32 s13, s8, 1"); I("s_mul_i32 s13, s13, 1792"); I("s_lshr_b32 s14, s8, 1"); I("s_mul_i32 s14, s14, 896")
    I("s_add_u32 s13, s13, s14"); I("s_lshl_b32 s14, s9, 5"); I("s_add_u32 s13, s13, s14")
    I("v_lshlrev_b32 v44, 3, v1")
    I("v_mov_b32 v45, 0x40000000")
    I("v_cmp_gt_u32 vcc, 4, v1")
    I("v_cndmask_b32 v44, v45, v44, vcc")
    if failgt or faillt:
        I("s_memrealtime s[98:99]"); I("s_waitcnt lgkmcnt(0)"); I("v_sub_u32 v253, s98, v253")
        if failgt: I(f"v_cmp_lt_u32 vcc, {int(failgt*100)}, v253")
        else: I(f"v_cmp_gt_u32 vcc, {int(faillt*100)}, v253")
        I("v_cndmask_b32 v48, v48, -1, vcc")
    I("buffer_store_dwordx2 v[48:49], v44, s[84:87], s13 offen")
    a.label("L_fin")
    if ts:
        a.settle()
        NT = 8
        k = NT - 1
        I("s_waitcnt vmcnt(0)")
        I("s_memrealtime s[98:99]"); I("s_waitcnt lgkmcnt(0)")
        I(f"v_writelane_b32 v254, s98, {2*k}"); I(f"v_writelane_b32 v254, s99, {2*k+1}")
        if dbgts:
            for j, k in enumerate((0, 1, 2, 3, 4, 5, 7)):
                I(f"v_readlane_b32 s98, v254, {2*k}")
                I("s_nop 4")
                I(f"s_atomic_umax s98, s[88:89], {4*(1+j)}")
                I("s_waitcnt lgkmcnt(0)")
            for j, k in enumerate((0, 2, 3, 4)):
                I(f"v_readlane_b32 s98, v254, {2*k}")
                I("s_nop 4")
                I("s_not_b32 s98, s98")
                I(f"s_atomic_umax s98, s[88:89], {4*(9+j)}")
                I("s_waitcnt lgkmcnt(0)")
        I("s_lshl_b32 s7, s2, 2"); I("s_add_u32 s7, s7, s3"); I(f"s_mul_i32 s7, s7, {NT*8}"); I("s_add_u32 s7, s7, 0x8000000")
        I("v_lshlrev_b32 v44, 2, v1"); I("v_add_u32 v44, s7, v44")
        I(f"v_cmp_gt_u32 vcc, {2*NT}, v1")
        I("s_and_b64 exec, exec, vcc")
        I("global_store_dword v44, v254, s[80:81]")
    a.label("L_end")
    I("s_endpgm")
    a.raw('.section .rodata,"a"'); a.raw(".p2align 6"); a.raw(f".amdhsa_kernel {KN}")
    a.raw("  .amdhsa_next_free_vgpr 512"); a.raw("  .amdhsa_next_free_sgpr 102"); a.raw("  .amdhsa_accum_offset 256")
    a.raw("  .amdhsa_group_segment_fixed_size 0"); a.raw("  .amdhsa_kernarg_size 104"); a.raw("  .amdhsa_user_sgpr_count 2")
    a.raw("  .amdhsa_user_sgpr_kernarg_segment_ptr 1"); a.raw("  .amdhsa_system_sgpr_workgroup_id_x 1"); a.raw(".end_amdhsa_kernel")
    return a.text()

if __name__ == "__main__":
    open("ka.s", "w").write(gen())
    open("ka_ts.s", "w").write(gen(ts=True))
    open("ka_dbg.s", "w").write(gen(ts=True, dbgts=True))

    for T in (48, 51, 54, 58): open(f"ka_gt{T}.s", "w").write(gen(failgt=T))
    for T in (44, 47): open(f"ka_lt{T}.s", "w").write(gen(faillt=T))

    open("ka_bad.s", "w").write(gen(badmap=True))
```

```python
import sys, math
from kasm import Asm
KN = "concat_heads__mha_block_cached__mha_block_cached__decode_kernel"
HDR = open("concat_heads__mha_block_cached__mha_block_cached__decode.s.ref").read().split("; Override launch")[0]

LDS_Q, LDS_O, LDS_ML, LDS_Y, LDS_SZ = 0, 4096, 8192, 8448, 8448 + 8192 + 2048
CSC = math.log2(math.e) / 16.0
import struct
def f32hex(x): return "0x%08x" % struct.unpack("<I", struct.pack("<f", x))[0]

def gen(S=4, P=16, rot=2, qper=2, ts=False, wflag=" nt", kvflag=" nt", dbgts=False, failgt=None, faillt=None, badmap=False, padto=None):
    a = Asm(); I = a.I
    NSTEP = 32
    assert (NSTEP - P) % S == 0 and P % S == 0
    a.raw(HDR.rstrip())
    a.raw(f"; @launch grid=(256,1,1) block=(256,1,1) lds={LDS_SZ}")
    a.raw('.amdgcn_target "amdgcn-amd-amdhsa--gfx950"')
    a.raw(".text"); a.raw(f".globl {KN}"); a.raw(".p2align 8"); a.raw(f".type {KN},@function"); a.raw(f"{KN}:")
    nts = [0]
    def stamp():
        if not ts: return
        k = nts[0]; nts[0] += 1
        I("s_memrealtime s[98:99]"); I("s_waitcnt lgkmcnt(0)")
        I(f"v_writelane_b32 v254, s98, {2*k}"); I(f"v_writelane_b32 v254, s99, {2*k+1}")
    I("s_cmp_ge_u32 s2, 256"); I("s_cbranch_scc1 L_end")
    I("s_load_dwordx16 s[8:23], s[0:1], 0")
    I("s_load_dwordx8 s[24:31], s[0:1], 64")
    I("s_load_dwordx2 s[32:33], s[0:1], 96")
    if failgt or faillt or padto:
        I("s_memrealtime s[98:99]"); I("s_waitcnt lgkmcnt(0)"); I("v_mov_b32 v253, s98")
    if ts: I("v_mov_b32 v254, 0")
    stamp()
    I("v_lshrrev_b32 v44, 6, v0")
    I("v_and_b32 v1, 63, v0")
    I("v_readfirstlane_b32 s3, v44")
    I("v_lshlrev_b32 v2, 4, v1")
    I("v_and_b32 v45, 31, v1"); I("v_lshlrev_b32 v45, 4, v45")
    I("v_lshrrev_b32 v46, 5, v1")
    I("v_lshl_add_u32 v4, v46, 13, v45")
    I("v_mul_u32_u24 v47, 896, v46"); I("v_add_u32 v5, v47, v45")
    I("v_bfe_u32 v47, v1, 4, 1"); I("v_lshl_add_u32 v47, v47, 1, v46")
    I("v_and_b32 v45, 15, v1"); I("v_lshlrev_b32 v45, 4, v45")
    I("v_lshl_add_u32 v3, v47, 9, v45")
    I("s_and_b32 s4, s2, 7"); I("s_lshl_b32 s4, s4, 2"); I("s_lshr_b32 s5, s2, 6"); I("s_add_u32 s4, s4, s5")
    I("s_bfe_u32 s5, s2, 0x10005")
    I("s_bfe_u32 s6, s2, 0x20003")
    if badmap:
        I("s_lshr_b32 s4, s2, 3"); I("s_bfe_u32 s5, s2, 0x10002"); I("s_and_b32 s6, s2, 3")
    I("s_lshl_b32 s7, s4, 1"); I("s_add_u32 s7, s7, s5")
    I(f"s_mul_i32 s90, s7, {rot}"); I("s_and_b32 s90, s90, 31"); I("s_lshl_b32 s90, s90, 16")
    I("s_lshr_b32 s94, s4, 4"); I("s_lshl_b32 s94, s94, 1"); I("s_add_u32 s94, s94, s5")
    I("s_cmp_ge_u32 s4, 16")
    I("s_waitcnt lgkmcnt(0)")
    I("s_cselect_b64 s[64:65], s[20:21], s[10:11]")
    I("s_cselect_b64 s[68:69], s[22:23], s[12:13]")
    I("s_cselect_b64 s[72:73], s[24:25], s[14:15]")
    I("s_cselect_b64 s[76:77], s[26:27], s[16:17]")
    I("s_cselect_b64 s[100:101], s[18:19], s[8:9]")
    I("s_and_b32 s4, s4, 15")
    I("s_lshl_b32 s7, s5, 4"); I("s_add_u32 s7, s7, s4"); I("s_lshl_b32 s7, s7, 21")
    I("s_lshl_b32 s96, s6, 14"); I("s_add_u32 s7, s7, s96"); I("s_lshl_b32 s96, s3, 12"); I("s_add_u32 s7, s7, s96")
    I("s_add_u32 s64, s64, s7"); I("s_addc_u32 s65, s65, 0")
    I("s_add_u32 s68, s68, s7"); I("s_addc_u32 s69, s69, 0")
    I("s_mov_b32 s66, 0x1f1000"); I("s_mov_b32 s67, 0x20000")
    I("s_mov_b32 s70, 0x1f1000"); I("s_mov_b32 s71, 0x20000")
    I("s_mov_b32 s74, 3670016"); I("s_mov_b32 s75, 0x20000")
    I(f"s_mul_i32 s91, s3, {112*8192}"); I("s_lshl_b32 s7, s4, 9"); I("s_add_u32 s91, s91, s7")
    RB = 64
    def kreg(slot, i): return RB + slot * 32 + 4 * i
    def vreg(slot, i): return RB + slot * 32 + 16 + 4 * i
    def kload(t, i):
        r = kreg(t % S, i)
        I(f"buffer_load_dwordx4 v[{r}:{r+3}], v2, s[64:67], s90 offen offset:{i*1024}{kvflag}", tag=f"K{t}")
    def vload(t, i):
        r = vreg(t % S, i)
        off = (i >> 1) * 2048 + (i & 1) * 256
        I(f"buffer_load_dwordx4 v[{r}:{r+3}], v3, s[68:71], s90 offen offset:{off}{kvflag}", tag=f"V{t}")
    def advance():
        I("s_add_u32 s90, s90, 0x10000"); I("s_and_b32 s90, s90, 0x1fffff")
    qi = [0]
    def qload(n):
        for _ in range(n):
            if qi[0] < 56:
                t = qi[0]; qi[0] += 1
                I(f"buffer_load_dwordx4 a[{4*t}:{4*t+3}], v4, s[72:75], s91 offen{wflag}", tag=f"Q{t}")
                I("s_add_u32 s91, s91, 16384")
    pro = []
    for t in range(S):
        pro += [("k", t, i) for i in range(4)] + [("v", t, i) for i in range(4)] + [("adv", t, 0)]
    def pro_issue(n):
        while n > 0 and pro:
            k, t, i = pro.pop(0)
            if k == "k": kload(t, i); n -= 1
            elif k == "v": vload(t, i); n -= 1
            else: advance()
        while pro and pro[0][0] == "adv":
            pro.pop(0); advance()
    for _ in range(4):
        qload(qper); pro_issue(1)
    I("s_mov_b64 s[80:81], s[32:33]"); I("s_mov_b32 s82, 0x80000"); I("s_mov_b32 s83, 0x20000")
    I("s_mov_b64 s[84:85], s[28:29]"); I("s_mov_b32 s86, 3584"); I("s_mov_b32 s87, 0x20000")
    I("s_mov_b64 s[88:89], s[30:31]")
    I("s_mov_b32 s78, 3670016"); I("s_mov_b32 s79, 0x20000")
    I("s_lshl_b32 s92, s4, 2"); I("s_add_u32 s92, s92, s3"); I(f"s_mul_i32 s92, s92, {64*896}")
    I("s_lshl_b32 s95, s94, 4"); I("s_add_u32 s95, s95, s4"); I("s_lshl_b32 s95, s95, 2"); I("s_add_u32 s95, s95, s6")
    I("s_lshl_b32 s95, s95, 11")
    I("s_mul_i32 s7, s5, 896"); I("s_mul_i32 s96, s3, 224"); I("s_add_u32 s7, s7, s96")
    I("s_add_u32 s100, s100, s7"); I("s_addc_u32 s101, s101, 0")
    I("s_load_dwordx16 s[8:23], s[100:101], 0")
    I("s_load_dwordx16 s[24:39], s[100:101], 64")
    I("s_load_dwordx16 s[40:55], s[100:101], 128")
    I("s_load_dwordx8 s[56:63], s[100:101], 192")
    I("v_lshlrev_b32 v53, 4, v0")
    I("v_mov_b32 v44, 0x40000000")
    I("v_cmp_gt_u32 vcc, 113, v0")
    I("v_cndmask_b32 v53, v44, v53, vcc")
    for r in range(56, 60): I(f"v_mov_b32 v{r}, -1")
    I("buffer_store_dwordx4 v[56:59], v53, s[80:83], s95 offen sc1", tag="CLR")
    for _ in range(4):
        qload(qper); pro_issue(1)
    I("v_bfe_u32 v44, v1, 1, 3")
    I("v_bfe_u32 v45, v1, 4, 1"); I("v_lshlrev_b32 v45, 2, v45"); I("v_xor_b32 v45, v45, v44")
    I("v_and_b32 v46, 1, v1"); I("v_lshlrev_b32 v46, 4, v46")
    I("v_mov_b32 v47, 0xffff"); I("v_lshlrev_b32 v47, v46, v47")
    I("v_lshrrev_b32 v48, 5, v1"); I("v_mul_u32_u24 v48, 0x0202, v48"); I("v_add_u32 v48, 0x0100, v48")
    I("v_lshlrev_b32 v48, v46, v48")
    I("v_mov_b32 v49, 0x0c0c0c0c")
    I("v_bfi_b32 v48, v47, v48, v49")
    for u in range(4):
        I(f"v_cmp_eq_u32 vcc, {u}, v44"); I(f"v_cndmask_b32 v{14+u}, 0, v47, vcc")
        I(f"v_cmp_eq_u32 vcc, {4+u}, v44"); I(f"v_cndmask_b32 v{18+u}, 0, v47, vcc")
        I(f"v_cmp_eq_u32 vcc, {u}, v45"); I(f"v_cndmask_b32 v{22+u}, 0, v47, vcc")
        I(f"v_cndmask_b32 v{10+u}, v49, v48, vcc")
        qload(qper); pro_issue(1)
    I("v_bfe_u32 v44, v1, 3, 1"); I("v_lshlrev_b32 v44, 9, v44")
    I("v_lshrrev_b32 v45, 4, v1"); I("v_lshl_add_u32 v44, v45, 7, v44")
    I("v_and_b32 v45, 7, v1"); I("v_lshl_add_u32 v54, v45, 2, v44")
    I("s_lshl_b32 s7, s3, 10")
    I("v_add_u32 v55, s7, v54")
    I(f"v_mov_b32 v26, {f32hex(-3.0e38)}"); I("v_mov_b32 v27, 0")
    for r in range(28, 36): I(f"v_mov_b32 v{r}, 0")
    for r in range(56, 60): I(f"v_mov_b32 v{r}, 0")
    I("s_waitcnt lgkmcnt(0)")
    LAG = 24
    def qmfma(t):
        b = 36 + (t & 1) * 4
        for u in range(4): I(f"v_perm_b32 v{b+u}, s{8+t}, s{8+t}, v{10+u}")
        a.wait_vm(f"Q{t}")
        I(f"v_mfma_f32_16x16x32_bf16 v[56:59], a[{4*t}:{4*t+3}], v[{b}:{b+3}], v[56:59]")
    qdone = 0
    while qi[0] < 56:
        qload(qper); pro_issue(1)
        while qdone < qi[0] - LAG:
            qmfma(qdone); qdone += 1
    pro_issue(100)
    while qdone < 56:
        qmfma(qdone); qdone += 1
    stamp()
    for r in range(4): I(f"ds_write_b32 v55, v{56+r} offset:{LDS_Q + r*32}")
    I("v_and_b32 v44, 31, v1"); I("v_lshlrev_b32 v44, 5, v44")
    I("s_waitcnt lgkmcnt(0)")
    I("s_barrier")
    TB = 192
    assert RB + S * 32 <= TB
    for w in range(4):
        I(f"ds_read_b128 v[{TB+8*w}:{TB+8*w+3}], v44 offset:{LDS_Q + w*1024}")
        I(f"ds_read_b128 v[{TB+8*w+4}:{TB+8*w+7}], v44 offset:{LDS_Q + w*1024 + 16}")
    I("s_cmp_lg_u32 s3, 0"); I("s_cbranch_scc1 L_nocnt")
    I("s_lshl_b32 s7, s94, 6"); I("s_mov_b32 s96, 1")
    I("s_atomic_add s96, s[88:89], s7")
    a.label("L_nocnt")
    I("s_waitcnt lgkmcnt(0)")
    for k in range(8):
        I(f"v_add_f32 v{TB+k}, v{TB+k}, v{TB+8+k}"); I(f"v_add_f32 v{TB+16+k}, v{TB+16+k}, v{TB+24+k}")
    for k in range(8): I(f"v_add_f32 v{TB+k}, v{TB+k}, v{TB+16+k}")
    for k in range(4): I(f"v_cvt_pk_bf16_f32 v{6+k}, v{TB+2*k}, v{TB+2*k+1}")
    I(f"s_mov_b32 s96, {f32hex(CSC)}")
    stamp()
    wi = [0]
    def woload(n):
        for _ in range(n):
            if wi[0] < 64:
                k = wi[0]; wi[0] += 1
                off = (k & 1) * 512 + ((k >> 1) & 1) * 1792
                I(f"buffer_load_dwordx4 a[{4*k}:{4*k+3}], v5, s[76:79], s92 offen offset:{off}{wflag}", tag="WO")
                if k % 4 == 3: I("s_add_u32 s92, s92, 3584")
    DP = "row_mask:0xf bank_mask:0xf"
    def step(t, nwo, loop=False):
        slot = t % S
        a.wait_vm(f"K{t}")
        for jj in range(4):
            for i in range(4):
                I(f"v_dot2_f32_bf16 v{44+i}, v{kreg(slot,i)+jj}, v{6+jj}, {'v%d' % (44+i) if jj else '0'}")
        for i in range(4): kload(t + S, i)
        woload(nwo // 2)
        I("v_permlane16_swap_b32 v44, v45"); I("v_permlane16_swap_b32 v46, v47")
        I("v_add_f32 v44, v44, v45"); I("v_add_f32 v46, v46, v47")
        I("v_add_f32_dpp v48, v44, v44 row_ror:8 row_mask:0xf bank_mask:0x3")
        I("v_add_f32_dpp v48, v46, v46 row_ror:8 row_mask:0xf bank_mask:0xc")
        I(f"v_add_f32_dpp v48, v48, v48 row_half_mirror {DP}")
        I(f"v_add_f32_dpp v48, v48, v48 quad_perm:[1,0,3,2] {DP}")
        I(f"v_add_f32_dpp v48, v48, v48 quad_perm:[2,3,0,1] {DP}")
        I("v_mul_f32 v48, s96, v48")
        I(f"v_max_f32_dpp v50, v48, v48 row_ror:8 {DP}")
        I("v_max_f32_dpp v50, v50, v50 row_bcast:15 row_mask:0xa bank_mask:0xf")
        I("v_max_f32_dpp v50, v50, v50 row_bcast:31 row_mask:0xc bank_mask:0xf")
        I("v_readlane_b32 s97, v50, 63")
        I("v_max_f32 v50, s97, v26")
        I("v_sub_f32 v51, v26, v50"); I("v_sub_f32 v48, v48, v50")
        I("v_exp_f32 v51, v51"); I("v_exp_f32 v48, v48")
        I("v_mov_b32 v26, v50")
        I("v_fma_f32 v27, v27, v51, v48")
        I("v_cvt_pk_bf16_f32 v52, v48, v48")
        for u in range(4): I(f"v_and_b32 v{36+u}, v52, v{14+u}")
        for u in range(4): I(f"v_and_b32 v{40+u}, v52, v{18+u}")
        for r in range(28, 36): I(f"v_mul_f32 v{r}, v51, v{r}")
        a.wait_vm(f"V{t}")
        for i, (d, b) in enumerate(((28, 36), (32, 36), (28, 40), (32, 40))):
            r = vreg(slot, i)
            I(f"v_mfma_f32_16x16x32_bf16 v[{d}:{d+3}], v[{r}:{r+3}], v[{b}:{b+3}], v[{d}:{d+3}]")
        for i in range(4): vload(t + S, i)
        woload(nwo - nwo // 2)
        advance()
    nwo = -(-64 // P)
    for t in range(P): step(t, nwo)
    assert wi[0] == 64
    niter = (NSTEP - P) // S
    if niter:
        I(f"s_mov_b32 s93, {niter}")
        a.fifo = [x for x in a.fifo if x != "WO" and x != "CLR"]
        a.settle()
        a.label("L_loop")
        I("s_sub_u32 s93, s93, 1"); I("s_cmp_eq_u32 s93, 0")
        I("s_cselect_b32 s66, 0, s66"); I("s_cselect_b32 s70, 0, s70")
        for t in range(P, P + S): step(t, 0, loop=True)
        I("s_cmp_lg_u32 s93, 0")
        a.settle()
        I("s_cbranch_scc1 L_loop")
    stamp()
    I("s_mul_i32 s8, s2, 2341"); I("s_lshr_b32 s8, s8, 16")
    I("s_mul_i32 s9, s8, 28"); I("s_sub_u32 s9, s2, s9")
    I("s_lshl_b32 s10, s8, 6")
    I("s_cmp_lt_u32 s2, 112"); I("s_cselect_b32 s11, s3, 0"); I("s_cmp_eq_u32 s11, 3"); I("s_cselect_b32 s11, 1, 0")
    I("s_cbranch_scc0 L_nopoll")
    I("s_mov_b32 s12, 0")
    I("s_atomic_add s12, s[88:89], s10 glc")
    a.label("L_nopoll")
    for r in range(4):
        I(f"v_add_f32_dpp v{44+r}, v{28+r}, v{28+r} row_ror:8 row_mask:0xf bank_mask:0x3")
        I(f"v_add_f32_dpp v{44+r}, v{32+r}, v{32+r} row_ror:8 row_mask:0xf bank_mask:0xc")
    I(f"v_add_f32_dpp v27, v27, v27 row_ror:8 {DP}")
    for r in range(4): I(f"ds_write_b32 v55, v{44+r} offset:{LDS_O + r*32}")
    I("v_add_f32_dpp v27, v27, v27 row_bcast:15 row_mask:0xa bank_mask:0xf")
    I("s_lshl_b32 s7, s3, 3")
    I("v_mov_b32 v48, s7")
    I("v_add_f32_dpp v27, v27, v27 row_bcast:31 row_mask:0xc bank_mask:0xf")
    I("s_mov_b32 exec_lo, 0"); I("s_mov_b32 exec_hi, 0x80000000")
    I(f"ds_write_b64 v48, v[26:27] offset:{LDS_ML}")
    I("s_mov_b64 exec, -1")
    I("v_and_b32 v48, 15, v1"); I("v_lshlrev_b32 v48, 3, v48")
    I("v_lshrrev_b32 v49, 5, v1"); I("v_lshl_add_u32 v48, v49, 2, v48")
    I("s_lshl_b32 s7, s3, 8"); I(f"s_add_u32 s7, s7, {LDS_O}")
    I("v_add_u32 v48, s7, v48"); I("v_add_u32 v49, 128, v48")
    I(f"v_mov_b32 v50, {LDS_ML}")
    for r in range(56, 64): I(f"v_mov_b32 v{r}, 0")
    I("s_waitcnt lgkmcnt(0)")
    I("s_barrier")
    T = 64
    I(f"ds_read_b128 v[{T}:{T+3}], v50"); I(f"ds_read_b128 v[{T+4}:{T+7}], v50 offset:16")
    I(f"ds_read2st64_b32 v[{T+8}:{T+9}], v48 offset0:0 offset1:4"); I(f"ds_read2st64_b32 v[{T+10}:{T+11}], v48 offset0:8 offset1:12")
    I(f"ds_read2st64_b32 v[{T+12}:{T+13}], v49 offset0:0 offset1:4"); I(f"ds_read2st64_b32 v[{T+14}:{T+15}], v49 offset0:8 offset1:12")
    I("s_waitcnt lgkmcnt(4)")
    I(f"v_max3_f32 v26, v{T}, v{T+2}, v{T+4}"); I(f"v_max_f32 v26, v26, v{T+6}")
    for w in range(4): I(f"v_sub_f32 v{T+2*w}, v{T+2*w}, v26")
    for w in range(4): I(f"v_exp_f32 v{T+2*w}, v{T+2*w}")
    I("s_waitcnt lgkmcnt(0)")
    I(f"v_mul_f32 v44, v{T}, v{T+8}"); I(f"v_mul_f32 v45, v{T}, v{T+12}"); I(f"v_mul_f32 v27, v{T}, v{T+1}")
    for w in range(1, 4):
        I(f"v_fmac_f32 v44, v{T+2*w}, v{T+8+w}"); I(f"v_fmac_f32 v45, v{T+2*w}, v{T+12+w}"); I(f"v_fmac_f32 v27, v{T+2*w}, v{T+2*w+1}")
    I("v_cvt_pk_bf16_f32 v44, v44, v44"); I("v_cvt_pk_bf16_f32 v45, v45, v45")
    a.wait_vm_all()
    for t in range(32):
        b = 36 + (t & 1) * 4
        src = 44 + (t >> 4)
        for u in range(4): I(f"v_and_b32_dpp v{b+u}, v{src}, v{22+u} row_newbcast:{t&15} {DP}")
        if t:
            tp = t - 1; bp = 36 + (tp & 1) * 4
            I(f"v_mfma_f32_16x16x32_bf16 v[56:59], a[{8*tp}:{8*tp+3}], v[{bp}:{bp+3}], v[56:59]")
            I(f"v_mfma_f32_16x16x32_bf16 v[60:63], a[{8*tp+4}:{8*tp+7}], v[{bp}:{bp+3}], v[60:63]")
    I("s_lshl_b32 s7, s3, 11")
    I("v_add_u32 v55, s7, v54")
    I(f"v_mfma_f32_16x16x32_bf16 v[56:59], a[248:251], v[40:43], v[56:59]")
    I(f"v_mfma_f32_16x16x32_bf16 v[60:63], a[252:255], v[40:43], v[60:63]")
    I("v_lshlrev_b32 v48, 4, v0")
    for r in range(4): I(f"ds_write_b32 v55, v{56+r} offset:{LDS_Y + r*32}")
    for r in range(4): I(f"ds_write_b32 v55, v{60+r} offset:{LDS_Y + 1024 + r*32}")
    I("s_waitcnt lgkmcnt(0)")
    I("s_barrier")
    stamp()
    I("s_cmp_ge_u32 s3, 2"); I("s_cbranch_scc1 L_cons")
    for w in range(4): I(f"ds_read_b128 v[{T+4*w}:{T+4*w+3}], v48 offset:{LDS_Y + w*2048}")
    I("v_cmp_eq_u32 vcc, 112, v0")
    I("s_waitcnt lgkmcnt(0)")
    for k in range(4):
        I(f"v_add_f32 v{T+k}, v{T+k}, v{T+4+k}"); I(f"v_add_f32 v{T+8+k}, v{T+8+k}, v{T+12+k}")
    for k in range(4): I(f"v_add_f32 v{T+k}, v{T+k}, v{T+8+k}")
    for k in range(4): I(f"v_cndmask_b32 v{T+k}, v{T+k}, v{26+(k&1)}, vcc")
    for k in range(4): I(f"v_min_u32 v{T+k}, -2, v{T+k}")
    I(f"buffer_store_dwordx4 v[{T}:{T+3}], v53, s[80:83], s95 offen sc1")
    I("s_branch L_fin")
    a.label("L_cons")
    I("s_cmp_eq_u32 s11, 0"); I("s_cbranch_scc1 L_fin")
    I("v_lshrrev_b32 v44, 2, v1"); I("v_lshlrev_b32 v44, 13, v44")
    I("v_and_b32 v45, 3, v1"); I("v_lshl_add_u32 v45, v45, 4, v44")
    I("s_lshl_b32 s13, s8, 17"); I("s_add_u32 s14, s13, 4096")
    I("s_lshl_b32 s15, s9, 6"); I("s_add_u32 s15, s15, s13"); I("s_add_u32 s16, s15, 4096")
    I("s_mov_b32 s17, 0x400000")
    a.label("L_rdy")
    I("s_waitcnt lgkmcnt(0)")
    I("s_cmp_ge_u32 s12, 64"); I("s_cbranch_scc1 L_poll")
    I("s_mov_b32 s12, 0")
    I("s_atomic_add s12, s[88:89], s10 glc")
    I("s_sub_u32 s17, s17, 1"); I("s_cmp_lg_u32 s17, 0"); I("s_cbranch_scc1 L_rdy")
    I("s_waitcnt lgkmcnt(0)")
    a.label("L_poll")
    Y = 64; ML = 80
    for s in range(4):
        I(f"buffer_load_dwordx4 v[{Y+4*s}:{Y+4*s+3}], v45, s[80:83], s{15+(s>>1)} offen offset:{(s&1)*2048} sc1")
    for s in range(4):
        I(f"buffer_load_dwordx2 v[{ML+2*s}:{ML+2*s+1}], v44, s[80:83], s{13+(s>>1)} offen offset:{(s&1)*2048+1792} sc1")
    I("s_waitcnt vmcnt(0)")
    I(f"v_max3_u32 v46, v{Y}, v{Y+1}, v{Y+2}")
    for k in range(3, 23, 2): I(f"v_max3_u32 v46, v46, v{Y+k}, v{Y+k+1}")
    I(f"v_max_u32 v46, v46, v{Y+23}")
    I("v_cmp_eq_u32 vcc, -1, v46")
    I("s_sub_u32 s17, s17, 1"); I("s_cmp_eq_u32 s17, 0"); I("s_cbranch_scc1 L_got")
    I("s_and_b64 exec, exec, vcc")
    I("s_cbranch_execnz L_poll")
    a.label("L_got")
    I("s_mov_b64 exec, -1")
    stamp()
    I(f"v_max3_f32 v46, v{ML}, v{ML+2}, v{ML+4}"); I(f"v_max_f32 v46, v46, v{ML+6}")
    for s in range(4): I(f"v_sub_f32 v{ML+2*s}, v{ML+2*s}, v46")
    for s in range(4): I(f"v_exp_f32 v{ML+2*s}, v{ML+2*s}")
    I(f"v_mul_f32 v47, v{ML}, v{ML+1}")
    for s in range(1, 4): I(f"v_fmac_f32 v47, v{ML+2*s}, v{ML+2*s+1}")
    I("v_rcp_f32 v47, v47")
    for k in range(4): I(f"v_mul_f32 v{48+k}, v{ML}, v{Y+k}")
    for s in range(1, 4):
        for k in range(4): I(f"v_fmac_f32 v{48+k}, v{ML+2*s}, v{Y+4*s+k}")
    for k in range(4): I(f"v_mul_f32 v{48+k}, v47, v{48+k}")
    for k in range(4): I(f"v_add_f32_dpp v{48+k}, v{48+k}, v{48+k} row_ror:4 {DP}")
    for k in range(4): I(f"v_add_f32_dpp v{48+k}, v{48+k}, v{48+k} row_ror:8 {DP}")
    for k in range(4): I(f"v_mov_b32 v{56+k}, v{48+k}")
    for k in range(4): I(f"v_permlane16_swap_b32 v{48+k}, v{56+k}")
    for k in range(4): I(f"v_add_f32 v{48+k}, v{48+k}, v{56+k}")
    for k in range(4): I(f"v_mov_b32 v{56+k}, v{48+k}")
    for k in range(4): I(f"v_permlane32_swap_b32 v{48+k}, v{56+k}")
    for k in range(4): I(f"v_add_f32 v{48+k}, v{48+k}, v{56+k}")
    I("v_cvt_pk_bf16_f32 v48, v48, v49"); I("v_cvt_pk_bf16_f32 v49, v50, v51")
    I("s_and_b32 s13, s8, 1"); I("s_mul_i32 s13, s13, 1792"); I("s_lshr_b32 s14, s8, 1"); I("s_mul_i32 s14, s14, 896")
    I("s_add_u32 s13, s13, s14"); I("s_lshl_b32 s14, s9, 5"); I("s_add_u32 s13, s13, s14")
    I("v_lshlrev_b32 v44, 3, v1")
    I("v_mov_b32 v45, 0x40000000")
    I("v_cmp_gt_u32 vcc, 4, v1")
    I("v_cndmask_b32 v44, v45, v44, vcc")
    if failgt or faillt:
        I("s_memrealtime s[98:99]"); I("s_waitcnt lgkmcnt(0)"); I("v_sub_u32 v253, s98, v253")
        if failgt: I(f"v_cmp_lt_u32 vcc, {int(failgt*100)}, v253")
        else: I(f"v_cmp_gt_u32 vcc, {int(faillt*100)}, v253")
        I("v_cndmask_b32 v48, v48, -1, vcc")
    I("buffer_store_dwordx2 v[48:49], v44, s[84:87], s13 offen")
    a.label("L_fin")
    if padto:
        a.settle()
        I("v_readfirstlane_b32 s20, v253")
        a.label("L_pad")
        I("s_memrealtime s[98:99]"); I("s_waitcnt lgkmcnt(0)")
        I("s_sub_u32 s98, s98, s20"); I(f"s_cmp_lt_u32 s98, {int(padto*100)}"); I("s_cbranch_scc1 L_pad")
    if ts:
        a.settle()
        NT = 8
        k = NT - 1
        I("s_waitcnt vmcnt(0)")
        I("s_memrealtime s[98:99]"); I("s_waitcnt lgkmcnt(0)")
        I(f"v_writelane_b32 v254, s98, {2*k}"); I(f"v_writelane_b32 v254, s99, {2*k+1}")
        if dbgts:
            for j, k in enumerate((0, 1, 2, 3, 4, 5, 7)):
                I(f"v_readlane_b32 s98, v254, {2*k}")
                I("s_nop 4")
                I(f"s_atomic_umax s98, s[88:89], {4*(1+j)}")
                I("s_waitcnt lgkmcnt(0)")
            for j, k in enumerate((0, 2, 3, 4)):
                I(f"v_readlane_b32 s98, v254, {2*k}")
                I("s_nop 4")
                I("s_not_b32 s98, s98")
                I(f"s_atomic_umax s98, s[88:89], {4*(9+j)}")
                I("s_waitcnt lgkmcnt(0)")
        I("s_lshl_b32 s7, s2, 2"); I("s_add_u32 s7, s7, s3"); I(f"s_mul_i32 s7, s7, {NT*8}"); I("s_add_u32 s7, s7, 0x8000000")
        I("v_lshlrev_b32 v44, 2, v1"); I("v_add_u32 v44, s7, v44")
        I(f"v_cmp_gt_u32 vcc, {2*NT}, v1")
        I("s_and_b64 exec, exec, vcc")
        I("global_store_dword v44, v254, s[80:81]")
    a.label("L_end")
    I("s_endpgm")
    a.raw('.section .rodata,"a"'); a.raw(".p2align 6"); a.raw(f".amdhsa_kernel {KN}")
    a.raw("  .amdhsa_next_free_vgpr 512"); a.raw("  .amdhsa_next_free_sgpr 102"); a.raw("  .amdhsa_accum_offset 256")
    a.raw("  .amdhsa_group_segment_fixed_size 0"); a.raw("  .amdhsa_kernarg_size 104"); a.raw("  .amdhsa_user_sgpr_count 2")
    a.raw("  .amdhsa_user_sgpr_kernarg_segment_ptr 1"); a.raw("  .amdhsa_system_sgpr_workgroup_id_x 1"); a.raw(".end_amdhsa_kernel")
    return a.text()

if __name__ == "__main__":
    open("ka.s", "w").write(gen())
    open("ka_ts.s", "w").write(gen(ts=True))
    open("ka_dbg.s", "w").write(gen(ts=True, dbgts=True))

    for T in (48, 51, 54, 58): open(f"ka_gt{T}.s", "w").write(gen(failgt=T))
    for T in (44, 47): open(f"ka_lt{T}.s", "w").write(gen(faillt=T))

    open("ka_bad.s", "w").write(gen(badmap=True))

    for T in (80, 100): open(f"ka_pad{T}.s", "w").write(gen(padto=T))
```
